```python
import torch

def _softmax(x, axis=-1):
    return torch.softmax(x, dim=axis)
def _gelu(x):
    return torch.nn.functional.gelu(x, approximate="tanh")
def _silu(x):
    return torch.nn.functional.silu(x)
def _sigmoid(x):
    return torch.sigmoid(x)
def _layernorm(x, axis=-1, eps=1e-5):
    m = x.mean(dim=axis, keepdim=True)
    v = x.var(dim=axis, keepdim=True, unbiased=False)
    return (x - m) / torch.sqrt(v + eps)
def _scatter_add(tgt, idx, src, axis=0):
    return tgt.clone().index_add_(axis, idx, src)
def _segment_sum(src, seg, n):
    out = torch.zeros((n,) + src.shape[1:], dtype=src.dtype)
    return out.index_add_(0, seg, src)
def _pad(x, pw):
    flat = tuple(v for pair in reversed(pw) for v in pair)
    return torch.nn.functional.pad(x, flat)

kernel_name = 'gated_mix__spectral_gfnet__dense_activation_mish__prompt'

def setup_inputs():

    _w = (lambda a: (lambda t: t.to(torch.bfloat16) if t.is_floating_point() else t)(torch.as_tensor(a)))
    def _A_setup():
        B, S, D = 1, 2048, 512
        Df = D // 2 + 1
        return {
            "x": _w((lambda *s: torch.randn(*s, dtype=torch.bfloat16) * 0.05)(B, S, D)),
            "w_r": _w((lambda *s: torch.randn(*s, dtype=torch.bfloat16) * 0.8)(S, Df) * 0.02),
            "w_i": _w((lambda *s: torch.randn(*s, dtype=torch.bfloat16) * 0.8)(S, Df) * 0.02),
        }
    _A_in = _A_setup()

    def _B_setup():
        B, S, D, F = 1, 2048, 512, 1376
        return {
            "x": _w((lambda *s: torch.randn(*s, dtype=torch.bfloat16) * 0.05)(B, S, D)),
            "w1": _w((lambda *s: torch.randn(*s, dtype=torch.bfloat16) * 3.2)(D, F) * (D ** -0.5)),
            "b1": _w((lambda *s: torch.randn(*s, dtype=torch.bfloat16) * 0.05)(F)),
            "w2": _w((lambda *s: torch.randn(*s, dtype=torch.bfloat16) * 0.05)(F, D) * (F ** -0.5)),
        }
    _B_in = _B_setup()

    return {
        "A_x": _A_in["x"],
        "A_w_r": _A_in["w_r"],
        "A_w_i": _A_in["w_i"],
        "B_x": _B_in["x"],
        "B_w1": _B_in["w1"],
        "B_b1": _B_in["b1"],
        "B_w2": _B_in["w2"],
        "gate_w": _w((lambda *s: torch.randn(*s, dtype=torch.bfloat16) * 0.05)(512) * 16.0),
    }

def reference(A_x, A_w_r, A_w_i, B_x, B_w1, B_b1, B_w2, gate_w):
    def _A_ref(x, w_r, w_i):
        B, S, D = x.shape
        X = (lambda x, axes=(-2,-1): torch.fft.rfft2(x.float(), dim=axes))(x, axes=(-2, -1))
        W = w_r + 1j * w_i
        X = X * W
        y = (lambda x, s, axes=(-2,-1): torch.fft.irfft2(x, s=s, dim=axes).to(torch.bfloat16))(X, (S, D), axes=(-2, -1))
        return y

    def _B_ref(x, w1, b1, w2):
        h = torch.einsum("bsd,df->bsf", x, w1) + b1
        sp = torch.log1p(torch.exp(-torch.abs(h))) + torch.where(h > 0, h, torch.zeros_like(h))
        act = h * torch.tanh(sp)
        return torch.einsum("bsf,fd->bsd", act, w2)

    x = A_x
    g = _sigmoid((x * gate_w).sum(-1, keepdims=True))
    a = _A_ref(x, A_w_r, A_w_i)
    b = _B_ref(x, B_w1, B_b1, B_w2)
    return g * a + (1 - g) * b
```

```python
KNAME = 'gated_mix__spectral_gfnet__dense_activation_mish__prompt_kernel'
HDR = open('gated_mix__spectral_gfnet__dense_activation_mish__prompt.s.ref').read().split('; Override launch')[0]

class Asm:
    def __init__(self):
        self.launch=[]; self.body=[]; self.desc=[]; self.uid=0
    def add_launch(self, grid, block, lds, kernel=None):
        k = f'kernel={kernel} ' if kernel else ''
        self.launch.append(f'; @launch {k}grid=({grid[0]},{grid[1]},{grid[2]}) block=({block[0]},{block[1]},{block[2]}) lds={lds}')
    def __call__(self, s):
        for l in s.strip('\n').split('\n'):
            self.body.append(l if l.rstrip().endswith(':') else '    '+l.strip())
    def lab(self, base='L'):
        self.uid+=1; return f'{base}_{self.uid}'
    def begin(self, name=KNAME):
        self.body += [f'.globl {name}', '.p2align 8', f'.type {name},@function', f'{name}:']
    def end(self, name=KNAME, vgpr=256, sgpr=102, accum=None):
        if accum is None: accum=(vgpr+3)//4*4
        self.desc += ['.p2align 6', f'.amdhsa_kernel {name}', f'  .amdhsa_next_free_vgpr {vgpr}', f'  .amdhsa_next_free_sgpr {sgpr}',
          f'  .amdhsa_accum_offset {accum}', '  .amdhsa_group_segment_fixed_size 0', '  .amdhsa_kernarg_size 88',
          '  .amdhsa_user_sgpr_count 2', '  .amdhsa_user_sgpr_kernarg_segment_ptr 1', '  .amdhsa_system_sgpr_workgroup_id_x 1',
          '  .amdhsa_float_denorm_mode_32 3',
          '.end_amdhsa_kernel']
    def text(self):
        return HDR + '\n'.join(self.launch) + '\n.amdgcn_target "amdgcn-amd-amdhsa--gfx950"\n.text\n' + '\n'.join(self.body) + '\n.section .rodata,"a"\n' + '\n'.join(self.desc) + '\n'
    def save(self, path):
        open(path,'w').write(self.text())
```

```python
import re
from asmlib import HDR, KNAME

TRANS = ('v_exp_f32','v_log_f32','v_rcp_f32','v_rsq_f32','v_sqrt_f32','v_sin_f32','v_cos_f32','v_rcp_iflag_f32')
REG = re.compile(r'^(-|abs\()?([vas])(\d+|\[(\d+):(\d+)\])\)?$')
def regs_of(tok):
    tok=tok.strip()
    if tok in ('vcc','exec','m0','scc'): return {tok}
    if tok in ('vcc_lo','vcc_hi'): return {'vcc'}
    m=REG.match(tok)
    if not m: return set()
    k=m.group(2)
    if m.group(4) is not None: return {f'{k}{i}' for i in range(int(m.group(4)),int(m.group(5))+1)}
    return {f'{k}{m.group(3)}'}

class I:
    __slots__=('t','op','rd','wr','kind','tag','passes','srcc','ab','dpp','ctr','wide','opt')
    def __init__(s,t,tag=None):
        s.t=t; s.tag=tag; s.ctr=None; s.passes=0; s.srcc=set(); s.ab=set(); s.dpp=False; s.wide=False; s.opt=0
        code=t.split(';')[0].strip()
        if code.endswith(':') or code.startswith('.'):
            s.op=''; s.kind='label'; s.rd=set(); s.wr=set(); return
        p=code.split(None,1); s.op=op=p[0]
        rest=p[1] if len(p)>1 else ''
        ops=[o.strip() for o in rest.split(',')] if rest else []
        if ops:
            last=ops[-1].split()
            mods=last[1:]; ops[-1]=last[0] if last else ''
        else: mods=[]
        R=[regs_of(o) for o in ops]
        allr=set().union(*R) if R else set()
        s.rd=set(); s.wr=set()
        base=op.replace('_e32','').replace('_e64','').replace('_dpp','').replace('_sdwa','')
        if op.startswith('v_mfma'):
            s.kind='mfma'; s.wr=R[0]; s.ab=R[1]|R[2]; s.srcc=R[3]; s.rd=s.ab|s.srcc
            s.passes=8 if '32x32' in op else 4
        elif op.startswith('v_'):
            s.kind='trans' if base in TRANS else 'valu'
            s.dpp=op.endswith('_dpp')
            if base.startswith('v_cmp'):
                s.wr=R[0]; s.rd=set().union(*R[1:])
            elif base.startswith('v_permlane') and 'swap' in base:
                s.wr=R[0]|R[1]; s.rd=R[0]|R[1]; s.kind='perm'
            elif base in ('v_readfirstlane_b32','v_readlane_b32'):
                s.wr=R[0]; s.rd=set().union(*R[1:]); s.kind='rdlane'
            elif base in ('v_add_co_u32','v_sub_co_u32','v_addc_co_u32'):
                s.wr=R[0]|R[1]; s.rd=set().union(*R[2:])
            elif base=='v_nop': pass
            else:
                s.wr=R[0]; s.rd=set().union(*R[1:]) if len(R)>1 else set()
                if base in ('v_fmac_f32','v_dot2c_f32_bf16','v_pk_fmac_f16','v_writelane_b32') or s.dpp: s.rd|=R[0]
                if base=='v_cndmask_b32' and len(ops)==3: s.rd|={'vcc'}
        elif op.startswith('ds_'):
            s.kind='ds'; s.ctr='lg'
            if op.startswith('ds_read') or 'permute' in op or 'swizzle' in op: s.wr=R[0]; s.rd=set().union(*R[1:]) if len(R)>1 else set()
            else: s.rd=allr
            if 'addtid' in op: s.rd|={'m0'}
        elif op.startswith('buffer_') or op.startswith('global_'):
            s.kind='vm'; s.ctr='vm'
            if op in ('buffer_wbl2','buffer_inv'): pass
            elif 'lds' in mods or '_lds_' in op: s.rd=allr|{'m0'}; s.kind='vmlds'
            elif '_load' in op: s.wr=R[0]; s.rd=set().union(*R[1:])
            else:
                s.rd=allr
                if op.endswith('x3') or op.endswith('x4'): s.wide=(R[0] if op.startswith('buffer_') else R[1])
        elif op.startswith('s_'):
            s.kind='salu'
            if op.startswith('s_load') or op.startswith('s_mem') or op.startswith('s_buffer_load'):
                s.kind='smem'; s.wr=R[0]; s.rd=set().union(*R[1:]) if len(R)>1 else set()
            elif op.startswith('s_cmp') or op.startswith('s_bitcmp'): s.rd=allr
            elif op in ('s_nop','s_waitcnt','s_barrier','s_endpgm','s_branch','s_sleep','s_setprio') or op.startswith('s_cbranch'): pass
            else:
                s.wr=R[0] if R else set(); s.rd=set().union(*R[1:]) if len(R)>1 else set()
                if 'saveexec' in op: s.wr|={'exec'}
        else: raise ValueError('unknown op '+t)
    def states(s):
        if s.kind=='label': return 0
        if s.op=='s_nop': return int(s.t.split(';')[0].split()[1],0)+1
        return 1

class W:
    def __init__(s,vm=None,lg=None): s.vm=vm; s.lg=lg; s.opt=0

def isv(r): return r[0] in 'va' and r not in ('vcc',)
def need(p,c):
    n=0
    VALU=('valu','trans','perm','rdlane')
    pv = p.kind in VALU
    if pv:
        wv={r for r in p.wr if isv(r)}; ws=p.wr-wv
        if wv:
            if c.kind=='mfma' and wv&c.rd: n=max(n,2)
            if c.dpp and wv&c.rd: n=max(n,2)
            if c.kind=='perm' and wv&c.rd: n=max(n,2)
            if c.kind=='rdlane' and wv&c.rd: n=max(n,1)
            if p.kind=='trans' and c.kind in ('valu','perm','rdlane','mfma') and wv&c.rd: n=max(n,1)
        if ws:
            if c.kind in ('vm','vmlds') and ws&c.rd: n=max(n,5)
            if c.kind in VALU and ws&c.rd: n=max(n,4 if c.kind=='rdlane' else 2)
            if c.kind in ('salu','smem') and ws&c.rd: n=max(n,1)
            if c.op.startswith('s_cbranch_vcc') and 'vcc' in ws: n=max(n,1)
    if p.kind=='mfma':
        P=p.passes
        if c.kind=='mfma':
            if p.wr&c.ab: n=max(n,P+4)
            if p.wr&c.srcc and not (p.wr==c.srcc and p.passes==c.passes): n=max(n,P+2)
            if p.wr&c.wr and not (p.wr==c.srcc): n=max(n,P+2)
        elif c.kind in VALU or c.kind in ('vm','vmlds','ds'):
            if p.wr&(c.rd|c.wr): n=max(n,P+4)
            if c.kind in VALU and p.srcc&c.wr: n=max(n,P-1)
    if p.kind=='salu' and 'm0' in p.wr and 'm0' in c.rd and c.kind in ('vmlds','ds'): n=max(n,1)
    if p.wide and p.wide&c.wr: n=max(n,2)
    return n

class Gen:
    def __init__(s):
        s.items=[]; s.launch=[]; s.uid=0; s.cur=s.items; s.optdepth=0
    def lab(s,b='L'): s.uid+=1; return f'{b}_{s.uid}'
    def __call__(s,txt,tag=None):
        out=None
        for l in txt.strip('\n').split('\n'):
            l=l.strip()
            if not l or l.startswith(';'): continue
            out=I(l,tag); s.cur.append(out)
        return out
    def wait(s,vm=None,lg=None): s.cur.append(W(vm,lg))
    def sub(s,fn,*a,**k):
        save=s.cur; s.cur=[]; fn(*a,**k); r=s.cur; s.cur=save; return r
    def put(s,items): s.cur.extend(items)
    def optional(s,items):
        s.uid+=1
        for it in items: it.opt=s.uid
        s.cur.extend(items)
    def resolve(s):
        out=[]; q={'vm':[],'lg':[]}; done={'vm':set(),'lg':set()}
        mx={'vm':63,'lg':15}
        for it in s.items:
            if isinstance(it,W):
                parts=[]
                for c,tg in (('vm',it.vm),('lg',it.lg)):
                    if tg is None: continue
                    if tg=='all': n=0; idx=len(q[c])-1
                    else:
                        tgs=tg if isinstance(tg,(list,tuple,set)) else [tg]
                        tgs=[t for t in tgs if t is not None]
                        idxs=[i for i,x in enumerate(q[c]) if any(x is t or (isinstance(t,str) and x.tag==t) for t in tgs)]
                        if not idxs: continue
                        idx=max(idxs)
                        n=sum(1 for x in q[c][idx+1:] if x.opt==0 or x.opt==it.opt)
                        if n>mx[c]:
                            n=mx[c]
                    parts.append(f'{"vmcnt" if c=="vm" else "lgkmcnt"}({n})')
                    if it.opt==0: q[c]=q[c][idx+1:]
                    else: q[c]=[x for i,x in enumerate(q[c]) if i>idx or x.opt!=it.opt]
                if parts: out.append(I('s_waitcnt '+' '.join(parts)))
            else:
                if it.ctr:
                    c=it.ctr
                    if len(q[c])>=mx[c]:
                        out.append(I(f's_waitcnt {"vmcnt" if c=="vm" else "lgkmcnt"}({mx[c]-1})'))
                        q[c]=q[c][len(q[c])-(mx[c]-1):]
                    q[c].append(it)
                if it.kind=='smem': pass
                if it.op=='s_waitcnt':
                    if 'vmcnt(0)' in it.t and it.opt==0: q['vm']=[]
                    if 'lgkmcnt(0)' in it.t and it.opt==0: q['lg']=[]
                out.append(it)
        return out
    def hazards(s,ins):
        out=[]; nn=0
        for c in ins:
            if c.kind!='label':
                d=0; k=0
                for p in reversed(out):
                    if d>=20: break
                    r=need(p,c)
                    if r>d: k=max(k,r-d)
                    d+=p.states()
                while k>0:
                    m=min(k,16); out.append(I(f's_nop {m-1}')); k-=m; nn+=m
            out.append(c)
        s.nops=nn
        return out
    def text(s,launch,vgpr=512,accum=256,sgpr=102,name=KNAME,tail=''):
        ins=s.hazards(s.resolve())
        s.final=ins
        body='\n'.join((x.t if x.kind=='label' else '    '+x.t) for x in ins)
        return (HDR+launch+'\n.amdgcn_target "amdgcn-amd-amdhsa--gfx950"\n.text\n'
          f'.globl {name}\n.p2align 8\n.type {name},@function\n{name}:\n'+body+'\n'+tail+
          f'.section .rodata,"a"\n.p2align 6\n.amdhsa_kernel {name}\n  .amdhsa_next_free_vgpr {vgpr}\n  .amdhsa_next_free_sgpr {sgpr}\n'
          f'  .amdhsa_accum_offset {accum}\n  .amdhsa_group_segment_fixed_size 0\n  .amdhsa_kernarg_size 88\n  .amdhsa_user_sgpr_count 2\n'
          '  .amdhsa_user_sgpr_kernarg_segment_ptr 1\n  .amdhsa_system_sgpr_workgroup_id_x 1\n  .amdhsa_float_denorm_mode_32 3\n.end_amdhsa_kernel\n')

def merge(main, fill, start=0, every=1, per=1, pred=None):
    out=[]; fi=0; cnt=0
    for i,it in enumerate(main):
        out.append(it)
        if i>=start and (pred is None or pred(it)):
            cnt+=1
            if cnt%every==0:
                for _ in range(per):
                    if fi<len(fill): out.append(fill[fi]); fi+=1
    out.extend(fill[fi:])
    return out
def fl(x):
    import struct
    return '0x%08x'%struct.unpack('<I',struct.pack('<f',x))[0]
```

```python
import numpy as np
def bf2f(u): return (u.astype(np.uint32)<<16).view(np.float32)
def f2bf(f):
    u=np.ascontiguousarray(f,dtype=np.float32).view(np.uint32)
    return ((u+0x7FFF+((u>>16)&1))>>16).astype(np.uint16)
def rb(x): return bf2f(f2bf(x)).astype(np.float64)
OFF_X1T=0; OFF_WT=2<<20; OFF_Y1=4<<20; OFF_H=6<<20; OFF_G=12<<20; OFF_FLAG=(12<<20)+65536
class Model:
    def __init__(s, ref):
        s.x=bf2f(ref['A_x']).reshape(2048,512).astype(np.float64)
        s.wr=bf2f(ref['A_w_r']).reshape(2048,257).astype(np.float64); s.wi=bf2f(ref['A_w_i']).reshape(2048,257).astype(np.float64)
        s.w1=bf2f(ref['B_w1']).reshape(512,1376).astype(np.float64); s.b1=bf2f(ref['B_b1']).astype(np.float64)
        s.w2=bf2f(ref['B_w2']).reshape(1376,512).astype(np.float64); s.gw=bf2f(ref['gate_w']).astype(np.float64)
        s.ref=ref
        X=np.fft.rfft(s.x,axis=1)
        s.X1=X[:,:256].copy(); s.X1[:,0]=X[:,0].real+1j*X[:,256].real
        s.g=1/(1+np.exp(-(s.x@s.gw)))
        W=s.wr+1j*s.wi
        Y=np.fft.ifft(np.fft.fft(X,axis=0)*W,axis=0)*2048
        s.Y1=Y[:,:256].copy(); s.Y1[:,0]=Y[:,0].real+1j*Y[:,256].real
        s.Y1g=s.Y1*s.g[:,None]
        h=s.x@s.w1+s.b1
        s.H=h*np.tanh(np.log1p(np.exp(h)))
    def x1t(s):
        a=np.stack([s.X1.real,s.X1.imag],0)
        return a.reshape(2,256,8,256).transpose(3,1,0,2)
    def wt(s):
        o=np.zeros((256,4,64,8,2))
        for w in range(4):
            for l in range(64):
                k1=16*w+l%16; g=l//16
                ks=k1+64*(8*g+np.arange(8))
                o[:,w,l,:,0]=s.wr[ks,:256].T; o[:,w,l,:,1]=s.wi[ks,:256].T
        return o
    def y1(s):
        a=np.stack([s.Y1g.real,s.Y1g.imag],0)
        return a.reshape(2,32,2,4,8,256).transpose(1,5,0,3,2,4)
    def h(s):
        o=np.zeros((64,43,2,64,8))
        l=np.arange(64); sl=l%32; hh=l//32
        for u in range(2):
            for j in range(8):
                f=16*u+8*(j//4)+4*hh+j%4
                for p in range(43):
                    o[:,p,u,:,j]=s.H.reshape(64,32,1376)[:,sl,32*p+f]
        return o
if __name__=='__main__':
    ref=np.load('ref_seed0.npz')
    m=Model(ref)
    k=np.arange(256); d=np.arange(512)
    th=2*np.pi*np.outer(k,d)/512
    sc=2.0/(2048*512)
    Gr=np.cos(th)*sc; Gi=-np.sin(th)*sc
    Gr[0]=sc/2; Gi[0]=sc/2*(-1.0)**d
    ga=m.Y1g.real@Gr+m.Y1g.imag@Gi
    out=ga+(1-m.g)[:,None]*(m.H@m.w2)
    print(np.abs(out-ref['out64'].reshape(2048,512)).max())
    print(np.abs(m.X1).std(), np.abs(m.Y1).std())
```

```python
import sys, math
from kgen import *
from model import OFF_X1T, OFF_WT, OFF_Y1, OFF_H, OFF_G, OFF_FLAG
OFF_F1=OFF_FLAG; OFF_FH=OFF_FLAG+4096; OFF_FY=OFF_FLAG+8192; OFF_GEN=OFF_FLAG+12288
OFF_STAMP=14<<20
WS_REC=16<<20
SLOT=28672; L_XR=114688; L_T2=122880; L_W2E=131072; LDS_BYTES=163840
RED_PITCH=272
sX,sWR,sWI,sW1,sB1,sW2,sGW,sOUT,sWS=[f's[{28+4*i}:{31+4*i}]' for i in range(9)]
sW,sGRP,sMEM,sP0,sT1,sRB,sCB,sCOL,sTAG,sROT='s4 s5 s6 s7 s8 s9 s10 s11 s12 s13'.split()
sPAIR=lambda n:f's{64+n}'
sXO,sW1O,sLX,sLW,sIM,sHB,sW2B,sLE,sLR='s75 s76 s77 s78 s79 s26 s27 s24 s25'.split()
STAMP0=80
vL,vL16='v1','v2'
vXD=[f'v{4+i}' for i in range(4)]; vW1D=[f'v{8+i}' for i in range(3)]; vXF=[f'v{11+i}' for i in range(4)]; vW1F=['v15','v16']
vW2D=[f'v{17+i}' for i in range(4)]; vW2F=['v21','v22']; vW2E=['v23','v24']; vYF=['v25','v26']; vYD='v27'; vOMG=['v28','v29']
TWC=32; TWS=40; GC=48; RA=112; RB_=160; RC=192
aH=0; aF64=176; aF32=200
def vr(a,n=1): return f'v{a}' if n==1 else f'v[{a}:{a+n-1}]'
def ar(a,n=1): return f'a{a}' if n==1 else f'a[{a}:{a+n-1}]'

class KG(Gen):
    def __init__(s, prof=False, stop=99):
        super().__init__(); s.prof=prof; s.nst=0; s.stop=stop
    def stamp(s):
        if s.prof:
            assert s.nst<11
            s(f's_memrealtime s[{STAMP0+2*s.nst}:{STAMP0+2*s.nst+1}]'); s.nst+=1
    def prologue(s):
        s(f'''
        s_cmp_ge_u32 s2, 256
        s_cbranch_scc1 L_end
        s_load_dwordx16 s[4:19], s[0:1], 0
        s_load_dwordx4 s[20:23], s[0:1], 64
        s_load_dwordx2 s[24:25], s[0:1], 80
        ''')
        s.stamp()
        s(f'''
        v_and_b32 {vL}, 63, v0
        v_lshrrev_b32 v3, 6, v0
        v_lshlrev_b32 {vL16}, 4, {vL}
        v_readfirstlane_b32 s3, v3
        s_waitcnt lgkmcnt(0)
        ''')
        for i,(p,n) in enumerate([(4,2097152),(6,1052672),(8,1052672),(12,1409024),(14,2752),(16,1409024),(18,1024),(20,2097152),(24,WS_REC)]):
            b=28+4*i
            s(f's_mov_b32 s{b}, s{p}\ns_and_b32 s{b+1}, s{p+1}, 0xffff\ns_mov_b32 s{b+2}, {n}\ns_mov_b32 s{b+3}, 0x20000')
        s(f'''
        s_mov_b32 {sW}, s3
        s_and_b32 s14, s2, 7
        s_lshr_b32 s15, s2, 3
        s_lshr_b32 s16, s15, 4
        s_lshl_b32 {sGRP}, s14, 1
        s_add_u32 {sGRP}, {sGRP}, s16
        s_and_b32 {sMEM}, s15, 15
        s_lshl_b32 {sT1}, {sGRP}, 4
        s_add_u32 {sT1}, {sT1}, {sMEM}
        ''')
    def first_loads(s):
        s(f'''
        s_lshl_b32 s14, {sW}, 11
        s_add_u32 s15, s14, {L_XR}
        s_mov_b32 m0, s15
        s_lshl_b32 s16, {sT1}, 13
        s_add_u32 s16, s16, s14
        ''')
        s(f'buffer_load_dwordx4 {vL16}, {sX}, s16 offen lds','xr')
        s(f'buffer_load_dwordx4 {vL16}, {sX}, s16 offen offset:1024 lds','xr')
        s(f'''
        v_and_b32 v3, 1, v0
        v_mul_u32_u24 v3, {4*32896}, v3
        v_and_b32 v30, 0xfe, v0
        v_add_u32 v3, v3, v30
        s_and_b32 s14, s2, 63
        s_lshr_b32 s15, s2, 6
        s_lshl_b32 s15, s15, 9
        s_add_u32 s14, s14, s15
        s_mul_i32 s14, s14, 514
        ''')
        for jj in range(4):
            if jj: s(f's_add_u32 s14, s14, 32896')
            for ps in range(2):
                s(f'buffer_load_ushort v{64+8*ps+jj}, v3, {sWR}, s14 offen offset:{256*ps}','wl')
                s(f'buffer_load_ushort v{68+8*ps+jj}, v3, {sWI}, s14 offen offset:{256*ps}','wl')
        s(f'buffer_load_dwordx4 v[80:83], {vL16}, {sGW}, 0 offen','gw')
        s(f'v_mov_b32 v30, {OFF_GEN}')
        s(f'buffer_load_dword v84, v30, {sWS}, 0 offen sc1','gen')
    def setup_g1(s):
        s(f'''
        s_mul_i32 s14, {sMEM}, 3
        s_lshl_b32 s15, {sMEM}, 1
        s_add_u32 s15, s15, 11
        s_min_u32 {sP0}, s14, s15
        s_and_b32 s14, {sGRP}, 1
        s_lshl_b32 s14, s14, 2
        s_add_u32 s14, s14, {sMEM}
        s_and_b32 {sROT}, s14, 7
        s_lshl_b32 s14, {sGRP}, 2
        s_add_u32 s14, s14, {sW}
        s_lshl_b32 {sXO}, s14, 15          ; (128grp+32w)*1024
        s_mul_i32 {sHB}, s14, {43*2048}
        s_lshl_b32 s15, {sP0}, 11
        s_add_u32 {sHB}, {sHB}, s15
        s_add_u32 {sHB}, {sHB}, {OFF_H}
        s_mul_i32 {sW1O}, {sW}, {16*2752}
        s_lshl_b32 s15, {sP0}, 6
        s_add_u32 {sW1O}, {sW1O}, s15
        s_lshl_b32 {sLX}, {sW}, 12
        s_mul_i32 {sLW}, {sW}, 3072
        s_add_u32 {sLW}, {sLW}, 16384
        ''')
        s(f'''
        v_lshrrev_b32 v30, 3, {vL}
        v_lshlrev_b32 v30, 10, v30
        v_lshrrev_b32 v31, 4, {vL}
        v_and_b32 v3, 7, {vL}
        v_xor_b32 v3, v3, v31
        v_lshl_add_u32 {vXD[0]}, v3, 4, v30
        v_xor_b32 {vXD[1]}, 64, {vXD[0]}
        v_add_u32 {vXD[1]}, {7168}, {vXD[1]}
        v_add_u32 {vXD[2]}, {2*7168}, {vXD[0]}
        v_add_u32 {vXD[3]}, {2*7168}, {vXD[1]}
        ''')
        s(f's_cmp_gt_u32 {sMEM}, 10\ns_cselect_b32 s14, 8, 12')
        for i in range(3):
            s(f'''
            v_add_u32 v30, {64*i}, {vL}
            v_mul_u32_u24 v31, 0x5556, v30
            v_lshrrev_b32 v31, 18, v31
            v_mul_u32_u24 v3, 12, v31
            v_sub_u32 v3, v30, v3
            v_mul_u32_u24 v31, 2752, v31
            v_lshl_add_u32 v31, v3, 4, v31
            v_subrev_u32 v31, {1024*i}, v31
            v_cmp_gt_u32 vcc, s14, v3
            v_mov_b32 v30, 0x40000000
            v_cndmask_b32 {vW1D[i]}, v30, v31, vcc
            ''')
        s(f'''
        v_and_b32 v30, 31, {vL}
        v_lshrrev_b32 v31, 5, {vL}
        v_bfe_u32 v3, {vL}, 1, 3
        v_xor_b32 v3, v3, v31
        v_lshlrev_b32 v3, 4, v3
        v_lshl_add_u32 v3, v30, 7, v3
        v_add_u32 {vXF[0]}, {sLX}, v3
        v_xor_b32 {vXF[1]}, 32, {vXF[0]}
        v_xor_b32 {vXF[2]}, 64, {vXF[0]}
        v_xor_b32 {vXF[3]}, 96, {vXF[0]}
        ''')
        s(f'''
        v_bfe_u32 v30, {vL}, 2, 2
        v_lshl_add_u32 v30, v31, 3, v30
        v_mul_u32_u24 v30, 192, v30
        v_bfe_u32 v3, {vL}, 4, 1
        v_lshl_add_u32 v30, v3, 5, v30
        v_and_b32 v3, 3, {vL}
        v_lshl_add_u32 v30, v3, 3, v30
        v_add_u32 {vW1F[0]}, 16384, v30
        v_add_u32 {vW1F[1]}, {16384+2*SLOT}, v30
        ''')
    def bias_loads(s):
        s(f'''
        v_and_b32 v30, 31, {vL}
        v_lshlrev_b32 v30, 1, v30
        s_lshl_b32 s14, {sP0}, 6
        ''')
        for p in range(3): s(f'buffer_load_ushort v{RB_+8+4*p}, v30, {sB1}, s14 offen offset:{64*p}','b1')
    def bias_mfma(s):
        s(f'v_cmp_gt_u32 vcc, 32, {vL}\nv_mov_b32 v30, 0x3f80\nv_mov_b32 v{RB_+1}, 0\nv_mov_b32 v{RB_+2}, 0\nv_mov_b32 v{RB_+3}, 0\nv_cndmask_b32 v{RB_}, 0, v30, vcc')
        for p in range(3):
            for k in (1,2,3): s(f'v_mov_b32 v{RB_+8+4*p+k}, 0')
        s.wait(vm='b1')
        for p in range(3): s(f'v_mfma_f32_32x32x16_bf16 {vr(RA+16*p,16)}, {vr(RB_+8+4*p,4)}, {vr(RB_,4)}, 0')
    def g1_dma(s,c):
        sl=(c%4)*SLOT
        s(f'''
        s_add_u32 s14, {sROT}, {c}
        s_and_b32 s14, s14, 7
        s_lshl_b32 s15, s14, 7
        s_add_u32 s15, s15, {sXO}
        s_add_u32 s16, {sLX}, {sl}
        s_mov_b32 m0, s16
        s_mul_i32 s17, s14, {64*2752}
        ''')
        for i in range(4): s(f'buffer_load_dwordx4 {vXD[i]}, {sX}, s15 offen offset:{1024*i} lds',f'g1c{c}')
        s(f'''
        s_add_u32 s16, {sLW}, {sl}
        s_mov_b32 m0, s16
        s_add_u32 s17, s17, {sW1O}
        ''')
        for i in range(3): s(f'buffer_load_dwordx4 {vW1D[i]}, {sW1}, s17 offen offset:{1024*i} lds',f'g1c{c}')
    def angs(s,dst,step,base,ks):
        for d,k in zip(dst,ks):
            if k==0: s(f'v_mov_b32 v{d}, {base}')
            elif k==1: s(f'v_add_f32 v{d}, {step}, {base}')
            else: s(f'v_fmamk_f32 v{d}, {step}, {fl(k)}, {base}')
    def const_t1(s):
        T=RC
        s(f'''
        v_bfe_u32 v30, {vL}, 1, 3
        s_lshl_b32 s14, {sW}, 3
        v_add_u32 v30, s14, v30
        v_cvt_f32_u32 v30, v30                 ; k1
        v_lshrrev_b32 v31, 4, {vL}
        v_lshlrev_b32 v31, 2, v31
        v_cvt_f32_u32 v31, v31                 ; 4g
        v_and_b32 v3, 1, {vL}
        v_cvt_f32_u32 v3, v3                   ; pl
        v_mul_f32 v{T+8}, {fl(1/32)}, v30
        v_mul_f32 v{T+9}, {fl(0.25)}, v3
        v_fmac_f32 v{T+9}, v{T+8}, v31
        ''')
        s.angs(range(T,T+8),f'v{T+8}',f'v{T+9}',[16*(j//4)+j%4 for j in range(8)])
        for j in range(8): s(f'v_cos_f32 v{T+j}, v{T+j}')
        for j in range(4): s(f'v_cvt_pk_bf16_f32 v{48+j}, v{T+2*j}, v{T+2*j+1}')
        s(f'''
        v_fma_f32 v63, v3, 2.0, -1.0
        v_mul_f32 v{T+8}, {fl(-1/512)}, v30
        v_mul_f32 v{T+8}, v{T+8}, v63          ; pl? -k1/512 : +k1/512
        v_mul_f32 v{T+9}, v{T+8}, v31
        ''')
        s.angs(range(T,T+4),f'v{T+8}',f'v{T+9}',range(4))
        for j in range(4): s(f'v_cos_f32 v{52+j}, v{T+j}\nv_sin_f32 v{56+j}, v{T+j}')
        s(f'''
        v_bfe_u32 v30, {vL}, 1, 3
        v_cvt_f32_u32 v30, v30
        v_mul_f32 v{T+8}, {fl(1/16)}, v30
        v_mul_f32 v{T+9}, {fl(0.25)}, v3
        v_and_b32 v30, 15, {vL}
        v_cmp_eq_u32 vcc, 1, v30
        v_cndmask_b32 v{T+8}, v{T+8}, 0.5, vcc
        v_cndmask_b32 v{T+9}, v{T+9}, 0, vcc
        v_fmac_f32 v{T+9}, v{T+8}, v31
        ''')
        s.angs(range(T,T+4),f'v{T+8}',f'v{T+9}',range(4))
        for j in range(4): s(f'v_cos_f32 v{T+j}, v{T+j}')
        for j in range(2): s(f'v_cvt_pk_bf16_f32 v{60+j}, v{T+2*j}, v{T+2*j+1}')
        s(f'''
        v_cmp_gt_u32 vcc, 16, {vL}
        v_cndmask_b32 v62, v63, 0, vcc
        v_cmp_eq_u32 vcc, 1, v0
        v_cndmask_b32 v62, v62, 1.0, vcc
        ''')
    def const_t2(s):
        T=RA
        T=RC
        s(f'''
        v_and_b32 v30, 15, {vL}
        s_lshl_b32 s14, {sW}, 4
        v_add_u32 v3, s14, v30
        v_cvt_f32_u32 v3, v3                   ; col = 16w + l%16
        v_lshrrev_b32 v31, 4, {vL}
        v_cvt_f32_u32 v31, v31                 ; g
        v_mul_f32 v{T+16}, {fl(1/64)}, v3
        v_mul_f32 v{T+17}, 4.0, v31
        v_mul_f32 v{T+17}, v{T+17}, v{T+16}
        s_mov_b32 s14, 0x80008000
        ''')
        def tri(dst_a, n):
            for j in range(8): s(f'v_sin_f32 v{T+8+j}, v{T+j}\nv_cos_f32 v{T+j}, v{T+j}')
            for j in range(4):
                s(f'v_cvt_pk_bf16_f32 v{T+2*j}, v{T+2*j}, v{T+2*j+1}\nv_cvt_pk_bf16_f32 v{T+8+2*j}, v{T+8+2*j}, v{T+8+2*j+1}')
            for j in range(4):
                s(f'v_accvgpr_write_b32 a{dst_a+4*n+j}, v{T+2*j}\nv_accvgpr_write_b32 a{dst_a+16+4*n+j}, v{T+8+2*j}\nv_xor_b32 v{T+8+2*j}, s14, v{T+8+2*j}')
            for j in range(4): s(f'v_accvgpr_write_b32 a{dst_a+8+4*n+j}, v{T+8+2*j}')
        for u in range(2):
            s.angs(range(T,T+8),f'v{T+16}',f'v{T+17}',[32*u+16*(j//4)+j%4 for j in range(8)])
            tri(aF64,u)
        s(f'v_mul_f32 v{T+16}, {fl(1/2048)}, v3\nv_mul_f32 v{T+17}, {fl(8.0)}, v31\nv_mul_f32 v{T+17}, v{T+17}, v{T+16}')
        s.angs(range(T,T+8),f'v{T+16}',f'v{T+17}',range(8))
        for j in range(8): s(f'v_cos_f32 v{TWC+j}, v{T+j}\nv_sin_f32 v{TWS+j}, v{T+j}')
        s(f'''
        v_bfe_u32 v3, {vL}, 2, 2
        v_and_b32 v30, 3, {vL}
        v_lshl_add_u32 v3, v3, 3, v30
        v_cvt_f32_u32 v3, v3
        v_mul_f32 v31, {fl(8.0)}, v31
        ''')
        for t in range(2):
            s(f'v_add_f32 v30, {fl(4.0*t)}, v3\nv_mul_f32 v{T+16}, {fl(1/32)}, v30\nv_mul_f32 v{T+17}, v31, v{T+16}')
            s.angs(range(T,T+8),f'v{T+16}',f'v{T+17}',range(8))
            tri(aF32,t)
    def const_g(s):
        T=RC+16
        sc=2.0/(2048*512)
        s(f'''
        v_and_b32 v30, 31, {vL}
        s_lshl_b32 s14, {sCB}, 6
        v_add_u32 v30, s14, v30
        v_lshrrev_b32 v31, 5, {vL}
        v_lshlrev_b32 v31, 5, v31
        s_lshl_b32 s14, {sW}, 6
        v_add_u32 v31, s14, v31
        v_cvt_f32_u32 v31, v31                 ; b0
        ''')
        for dt in range(2):
            c=[T+0,T+1,T+2]; sn=[T+3,T+4,T+5]; tc=T+6; th=T+7
            s(f'''
            v_add_u32 v3, {32*dt}, v30
            v_cvt_f32_u32 v{th}, v3
            v_mul_f32 v{th}, {fl(1/512)}, v{th}
            v_mul_f32 v{c[0]}, v{th}, v31
            v_add_f32 v{c[1]}, v{th}, v{c[0]}
            v_fract_f32 v{c[0]}, v{c[0]}
            v_fract_f32 v{c[1]}, v{c[1]}
            v_cos_f32 v{tc}, v{th}
            v_sin_f32 v{sn[0]}, v{c[0]}
            v_sin_f32 v{sn[1]}, v{c[1]}
            v_cos_f32 v{c[0]}, v{c[0]}
            v_cos_f32 v{c[1]}, v{c[1]}
            v_add_f32 v{tc}, v{tc}, v{tc}
            v_mul_f32 v{sn[0]}, {fl(-sc)}, v{sn[0]}
            v_mul_f32 v{sn[1]}, {fl(-sc)}, v{sn[1]}
            v_mul_f32 v{c[0]}, {fl(sc)}, v{c[0]}
            v_mul_f32 v{c[1]}, {fl(sc)}, v{c[1]}
            ''')
            for n in range(32):
                if n>=2:
                    s(f'v_fma_f32 v{c[n%3]}, v{tc}, v{c[(n-1)%3]}, -v{c[(n-2)%3]}\nv_fma_f32 v{sn[n%3]}, v{tc}, v{sn[(n-1)%3]}, -v{sn[(n-2)%3]}')
                s(f'v_cvt_pk_bf16_f32 v{GC+(n//4)*8+dt*4+n%4}, v{c[n%3]}, v{sn[n%3]}')
            import struct
            hb=struct.unpack('<I',struct.pack('<f',sc/2))[0]>>16
            s(f'''
            v_lshlrev_b32 v3, 31, v3
            v_or_b32 v3, {hex(hb|(hb<<16))}, v3
            v_cmp_gt_u32 vcc, 32, v0
            v_cndmask_b32 v{GC+dt*4}, v{GC+dt*4}, v3, vcc
            ''')
    def t1(s):
        A=RC; D=RC+32
        s(f'v_lshlrev_b32 v30, 3, {vL}\nv_add_u32 v30, {L_XR}, v30\ns_lshl_b32 s14, {sW}, 11\ns_add_u32 s14, s14, {L_XR}\nv_add_u32 v31, s14, {vL16}')
        s.wait(vm='xr'); s('s_barrier')
        s.stamp()
        for r in range(8):
            for hh in range(2): s(f'ds_read_b64_tr_b16 {vr(A+4*r+2*hh,2)}, v30 offset:{1024*r+512*hh}',f't1a{r}')
            if r==3:
                pass
        for r in range(8):
            s.wait(lg=f't1a{r}')
            s(f'v_mfma_f32_16x16x32_bf16 {vr(D+4*r,4)}, {vr(A+4*r,4)}, v[48:51], 0')
        for e in range(2): s(f'ds_read_b128 {vr(88+4*e,4)}, v31 offset:{1024*e}','gx')
        for r in range(8):
            for k in range(4): s(f'v_mul_f32 v{A+4*r+k}, v{D+4*r+k}, v{52+k}')
            for k in range(4): s(f'v_fmac_f32_dpp v{A+4*r+k}, v{D+4*r+k}, v{56+k} quad_perm:[1,0,3,2] row_mask:0xf bank_mask:0xf')
            for k in range(2): s(f'v_cvt_pk_bf16_f32 v{D+4*r+k}, v{A+4*r+2*k}, v{A+4*r+2*k+1}')
            if r>=1: s(f'v_mfma_f32_16x16x16_bf16 {vr(A+4*(r-1),4)}, v[60:61], {vr(D+4*(r-1),2)}, 0')
        s(f'v_mfma_f32_16x16x16_bf16 {vr(A+28,4)}, v[60:61], {vr(D+28,2)}, 0')
        s(f'''
        v_bfe_u32 v30, {vL}, 1, 3
        v_lshrrev_b32 v3, 4, {vL}
        v_lshl_add_u32 v30, v3, 6, v30
        v_lshlrev_b32 v30, 13, v30
        v_and_b32 v3, 1, {vL}
        v_lshl_add_u32 v30, v3, 4, v30
        s_lshl_b32 s14, {sW}, 16
        s_lshl_b32 s15, {sT1}, 5
        s_add_u32 s14, s14, s15
        s_add_u32 s15, s14, {32*8192}
        ''')
        for r in range(8):
            s(f'v_fmac_f32_dpp v{A+4*r}, v{A+4*r+1}, v62 quad_perm:[1,0,3,2] row_mask:0xf bank_mask:0xf')
            s(f'v_fmac_f32_dpp v{A+4*r+2}, v{A+4*r+3}, v63 quad_perm:[1,0,3,2] row_mask:0xf bank_mask:0xf')
        for e in range(2):
            for k in range(4): s(f'v_cvt_pk_bf16_f32 v{D+4*e+k}, v{A+8*k+2*e}, v{A+8*k+4+2*e}')
            s(f'buffer_store_dwordx4 {vr(D+4*e,4)}, v30, {sWS}, s{14+e} offen sc1','st1')
    def wt(s):
        s(f'''
        v_lshrrev_b32 v30, 1, v0
        v_lshlrev_b32 v30, 13, v30
        v_and_b32 v3, 1, v0
        v_lshl_add_u32 v30, v3, 4, v30
        s_bfe_u32 s14, s2, 0x20004          ; k1/16
        s_lshl_b32 s14, s14, 11
        s_lshr_b32 s15, s2, 6
        s_lshl_b32 s15, s15, 4
        s_and_b32 s16, s2, 15
        s_add_u32 s15, s15, s16
        s_lshl_b32 s15, s15, 5
        s_add_u32 s14, s14, s15
        s_add_u32 s14, s14, {OFF_WT}
        s_add_u32 s15, s14, {128*8192}
        ''')
        s.wait(vm='wl')
        for ps in range(2):
            for jj in range(4): s(f'v_lshl_or_b32 v{64+8*ps+jj}, v{68+8*ps+jj}, 16, v{64+8*ps+jj}')
            s(f'buffer_store_dwordx4 {vr(64+8*ps,4)}, v30, {sWS}, s{14+ps} offen sc1','st1')
    def gate(s):
        s.wait(vm='gw',lg='gx')
        for e in range(2):
            s(f'v_mov_b32 v{96+e}, 0')
            for k in range(4): s(f'v_dot2c_f32_bf16 v{96+e}, v{88+4*e+k}, v{80+k}')
        s('s_nop 2')
        for m in ('row_shr:1 row_mask:0xf bank_mask:0xf bound_ctrl:0','row_shr:2 row_mask:0xf bank_mask:0xf bound_ctrl:0','row_shr:4 row_mask:0xf bank_mask:0xf bound_ctrl:0','row_shr:8 row_mask:0xf bank_mask:0xf bound_ctrl:0','row_bcast:15 row_mask:0xa bank_mask:0xf','row_bcast:31 row_mask:0xc bank_mask:0xf'):
            for e in range(2): s(f'v_add_f32_dpp v{96+e}, v{96+e}, v{96+e} {m}')
        for e in range(2): s(f'v_mul_f32 v{96+e}, {fl(-math.log2(math.e))}, v{96+e}')
        for e in range(2): s(f'v_exp_f32 v{96+e}, v{96+e}')
        for e in range(2): s(f'v_add_f32 v{96+e}, 1.0, v{96+e}')
        for e in range(2): s(f'v_rcp_f32 v{96+e}, v{96+e}')
        s(f'''
        s_lshl_b32 s14, {sT1}, 5
        s_lshl_b32 s15, {sW}, 3
        s_add_u32 s14, s14, s15
        v_cmp_eq_u32 vcc, 63, {vL}
        v_mov_b32 v30, 0x40000000
        v_mov_b32 v3, {OFF_G}
        v_cndmask_b32 v30, v30, v3, vcc
        ''')
        s(f'buffer_store_dwordx2 v[96:97], v30, {sWS}, s14 offen sc1','st1')
        s.wait(vm='gen')
        s(f'v_readfirstlane_b32 {sTAG}, v84\ns_add_u32 {sTAG}, {sTAG}, 1')
    def signal(s,off,idx):
        s(f'''
        v_cmp_eq_u32 vcc, 0, v0
        v_mov_b32 v30, 0x40000000
        v_mov_b32 v3, {off}
        v_cndmask_b32 v30, v30, v3, vcc
        v_mov_b32 v3, {sTAG}
        s_lshl_b32 s14, {idx}, 2
        ''')
        s(f'buffer_store_dword v3, v30, {sWS}, s14 offen sc1','sig')
    def poll256(s,off):
        L=s.lab('L_poll'); E=s.lab('L_polled')
        s(f'''
        v_add_u32 v30, {off}, {vL16}
        s_mov_b32 s14, 0
        {L}:
        buffer_load_dwordx4 v[184:187], v30, {sWS}, 0 offen sc1
        s_add_u32 s14, s14, 1
        s_cmp_gt_u32 s14, 200000
        s_cbranch_scc1 {E}
        s_waitcnt vmcnt(0)
        v_xor_b32 v184, {sTAG}, v184
        v_xor_b32 v185, {sTAG}, v185
        v_xor_b32 v186, {sTAG}, v186
        v_xor_b32 v187, {sTAG}, v187
        v_or3_b32 v184, v184, v185, v186
        v_or_b32 v184, v184, v187
        v_cmp_ne_u32 vcc, 0, v184
        s_cbranch_vccnz {L}
        {E}:
        s_waitcnt vmcnt(0)
        ''')
    def poll16(s,off):
        L=s.lab('L_poll'); E=s.lab('L_polled')
        s(f'''
        v_and_b32 v30, 15, {vL}
        v_lshlrev_b32 v30, 2, v30
        s_lshl_b32 s15, {sGRP}, 6
        s_add_u32 s15, s15, {off}
        s_mov_b32 s14, 0
        {L}:
        buffer_load_dword v184, v30, {sWS}, s15 offen sc1
        s_add_u32 s14, s14, 1
        s_cmp_gt_u32 s14, 200000
        s_cbranch_scc1 {E}
        s_waitcnt vmcnt(0)
        v_cmp_ne_u32 vcc, {sTAG}, v184
        s_cbranch_vccnz {L}
        {E}:
        s_waitcnt vmcnt(0)
        ''')
    def g1_reads(s,c,ks,b):
        sl=(c%4)*SLOT
        xo=sl
        tag=f'g1r{c}_{ks}'
        if xo<65536: s(f'ds_read_b128 {vr(RB_+4*b,4)}, {vXF[ks]} offset:{xo}',tag)
        else:
            s(f'v_add_u32 v30, {xo}, {vXF[ks]}'); s(f'ds_read_b128 {vr(RB_+4*b,4)}, v30',tag)
        base=vW1F[(c%4)//2]; o=(c%2)*SLOT
        for p in range(3):
            for hh in range(2): s(f'ds_read_b64_tr_b16 {vr(RB_+8+12*b+4*p+2*hh,2)}, {base} offset:{o+ks*3072+hh*768+p*64}',tag)
    def g1_main(s,D=2,hooks={}):
        s.wait(vm='g1c0'); s('s_barrier')
        s.g1_reads(0,0,0)
        for c in range(8):
            for ks in range(4):
                n=4*c+ks; b=n%2
                if ks<3: s.g1_reads(c,ks+1,1-b)
                elif c<7:
                    s.wait(vm=[f'g1c{c+1}']+(['st1'] if hooks.get('sigc')==c else [])); s('s_barrier')
                    if hooks.get('sigc')==c: s.signal(OFF_F1,'s2')
                    s.g1_reads(c+1,0,1-b)
                    if c+1+D<8: s.g1_dma(c+1+D)
                s.wait(lg=f'g1r{c}_{ks}')
                for p in range(3): s(f'v_mfma_f32_32x32x16_bf16 {vr(RA+16*p,16)}, {vr(RB_+8+12*b+4*p,4)}, {vr(RB_+4*b,4)}, {vr(RA+16*p,16)}')
    def g1_epi(s):
        T=RC+16; O=RC+32
        s(f's_cmp_gt_u32 {sMEM}, 10\ns_cselect_b32 s16, 0x40000000, 0')
        for p in range(3):
            if p==2: s(f's_add_u32 {sHB}, {sHB}, s16')
            for u in range(2):
                for q in range(2):
                    h=[RA+16*p+8*u+4*q+k for k in range(4)]; t=[T+4*q+k for k in range(4)]; e=[T+8+k for k in range(4)]
                    for k in range(4): s(f'v_mul_f32 v{t[k]}, {fl(math.log2(math.e))}, v{h[k]}')
                    for k in range(4): s(f'v_exp_f32 v{t[k]}, v{t[k]}')
                    for k in range(4): s(f'v_fma_f32 v{e[k]}, v{t[k]}, 0.5, 1.0')
                    for k in range(4): s(f'v_fma_f32 v{t[k]}, v{t[k]}, v{e[k]}, 1.0')
                    for k in range(4): s(f'v_rcp_f32 v{t[k]}, v{t[k]}')
                    for k in range(4): s(f'v_fma_f32 v{t[k]}, -v{h[k]}, v{t[k]}, v{h[k]}')
                    for k in range(2): s(f'v_cvt_pk_bf16_f32 v{O+4*u+2*q+k}, v{t[2*k]}, v{t[2*k+1]}')
                s(f'buffer_store_dwordx4 {vr(O+4*u,4)}, {vL16}, {sWS}, {sHB} offen offset:{(2048*p+1024*u)%4096} sc1' if p<2 else
                  f'buffer_store_dwordx4 {vr(O+4*u,4)}, {vL16}, {sWS}, s17 offen offset:{1024*u} sc1','sth')
            if p==1: s(f's_add_u32 s17, {sHB}, s16\ns_add_u32 s17, s17, 4096')
    def t2_loads(s):
        s(f'''
        s_cmp_eq_u32 s2, 0
        s_cselect_b32 {sCOL}, 120, s2
        s_cmp_eq_u32 s2, 120
        s_cselect_b32 {sCOL}, 0, {sCOL}
        s_lshl_b32 s15, {sCOL}, 13
        s_lshl_b32 s16, {sW}, 11
        s_add_u32 s17, s16, {L_T2}
        s_mov_b32 m0, s17
        v_lshlrev_b32 v30, 5, {vL}
        s_and_b32 s18, {sW}, 1
        s_lshl_b32 s18, s18, 12
        s_lshr_b32 s19, {sW}, 1
        s_lshl_b32 s19, s19, 4
        s_add_u32 s18, s18, s19
        s_add_u32 s18, s18, s15
        v_add_u32 v31, 1024, v30
        ''')
        s(f'buffer_load_dwordx4 v30, {sWS}, s18 offen sc1 lds','t2x')
        s(f'buffer_load_dwordx4 v31, {sWS}, s18 offen offset:1024 sc1 lds','t2x')
        s(f's_add_u32 s15, s15, s16\ns_add_u32 s15, s15, {OFF_WT}')
        for e in range(2): s(f'buffer_load_dwordx4 {vr(RC+4*e,4)}, v30, {sWS}, s15 offen offset:{16*e} sc1','t2w')
        s(f'''
        v_and_b32 v3, 15, {vL}
        v_lshlrev_b32 v3, 7, v3
        v_lshrrev_b32 v31, 4, {vL}
        v_lshl_add_u32 v3, v31, 5, v3
        s_add_u32 s15, s16, {OFF_G}
        ''')
        for e in range(2): s(f'buffer_load_dwordx4 {vr(RC+8+4*e,4)}, v3, {sWS}, s15 offen offset:{16*e} sc1','t2g')
        s(f'''
        v_and_b32 v3, 31, {vL}
        v_lshlrev_b32 v3, 2, v3
        s_lshl_b32 s15, {sRB}, 8
        s_add_u32 s15, s15, {OFF_G}
        ''')
        for i in range(2): s(f'buffer_load_dword {vOMG[i]}, v3, {sWS}, s15 offen offset:{128*i} sc1','omg')
    def cmul(s,re,im,c,sn,conj,tmp):
        a='' if not conj else '-'; b='-' if not conj else ''
        s(f'v_mul_f32 v{tmp}, v{re}, {sn}')
        s(f'v_mul_f32 v{re}, v{re}, {c}')
        s(f'v_fma_f32 v{re}, {a}v{im}, {sn}, v{re}')
        s(f'v_fma_f32 v{im}, v{im}, {c}, {b}v{tmp}')
    def t2(s,passb=False):
        Z=RB_; D1=RA; PK=RA+16; D2=RA+24; TMP=RA+40
        mf='v_mfma_f32_16x16x32_bf16'
        Br=lambda u:ar(aF64+4*u,4); Bi=lambda u:ar(aF64+8+4*u,4); nBi=lambda u:ar(aF64+16+4*u,4)
        Ar=lambda u:ar(aF32+4*u,4); Ai=lambda u:ar(aF32+8+4*u,4); nAi=lambda u:ar(aF32+16+4*u,4)
        z=lambda pl,t,u:Z+16*pl+8*t+4*u
        def reads(base,nm,planes=(0,1)):
            for u in range(2):
                for t in range(2):
                    for pl in planes:
                        for hh in range(2):
                            s(f'ds_read_b64_tr_b16 {vr(z(pl,t,u)+2*hh,2)}, {base} offset:{4096*pl+2048*u+1024*hh+8*t}',f'{nm}{u}{t}{pl}')
        def big(nm,m_rr,m_ir,m_ri,m_ii,real=False):
            for u in range(2):
                for t in range(2):
                    s.wait(lg=f'{nm}{u}{t}0')
                    s(f'{mf} {vr(D1+4*t,4)}, {vr(z(0,t,u),4)}, {m_rr(u)}, {vr(D1+4*t,4) if u else 0}')
                    s(f'{mf} {vr(D1+8+4*t,4)}, {vr(z(0,t,u),4)}, {m_ri(u)}, {vr(D1+8+4*t,4) if u else 0}')
                    if not real:
                        s.wait(lg=f'{nm}{u}{t}1')
                        s(f'{mf} {vr(D1+4*t,4)}, {vr(z(1,t,u),4)}, {m_ir(u)}, {vr(D1+4*t,4)}')
                        s(f'{mf} {vr(D1+8+4*t,4)}, {vr(z(1,t,u),4)}, {m_ii(u)}, {vr(D1+8+4*t,4)}')
        def pack(src):
            for pl in range(2):
                for k in range(4): s(f'v_cvt_pk_bf16_f32 v{PK+4*pl+k}, v{src+8*pl+2*k}, v{src+8*pl+2*k+1}')
        def small(dst,m_rr,m_ir,m_ri,m_ii):
            for t in range(2):
                s(f'{mf} {vr(dst+4*t,4)}, {m_rr(t)}, {vr(PK,4)}, 0')
                s(f'{mf} {vr(dst+8+4*t,4)}, {m_ri(t)}, {vr(PK,4)}, 0')
            for t in range(2):
                s(f'{mf} {vr(dst+4*t,4)}, {m_ir(t)}, {vr(PK+4,4)}, {vr(dst+4*t,4)}')
                s(f'{mf} {vr(dst+8+4*t,4)}, {m_ii(t)}, {vr(PK+4,4)}, {vr(dst+8+4*t,4)}')
        nm='b' if passb else 'a'
        if not passb:
            s(f'v_add_u32 v30, {L_T2}, {vL16}')
            s.wait(vm='t2x'); s('s_barrier')
            s.stamp()
            reads('v30','z'+nm)
            Ls=s.lab('L_nz')
            s(f's_cmp_lg_u32 {sCOL}, 0\ns_cselect_b32 {sIM}, 128, 0x40000000\ns_cbranch_scc1 {Ls}\ns_waitcnt lgkmcnt(0)'.replace('s_waitcnt lgkmcnt(0)','s_waitcnt lgkmcnt(0x0)'))
            for k in range(16): s(f'v_mov_b32 v{Z+16+k}, 0')
            s(f's_nop 1\n{Ls}:')
            big('z'+nm,Br,nBi,Bi,Br)
        else:
            s(f'v_add_u32 v30, {L_T2+4096}, {vL16}')
            reads('v30','z'+nm,planes=(0,))
            big('z'+nm,Br,nBi,Bi,Br,real=True)
        for k in range(8): s.cmul(D1+k,D1+8+k,f'v{TWC+k}',f'v{TWS+k}',False,TMP+k%4)
        pack(D1)
        small(D2,Ar,nAi,Ai,Ar)
        s.wait(vm='t2w'+('b' if passb else ''))
        for k in range(8):
            s(f'v_lshlrev_b32 v{TMP+4}, 16, v{RC+k}\nv_and_b32 v{TMP+5}, 0xffff0000, v{RC+k}')
            s.cmul(D2+k,D2+8+k,f'v{TMP+4}',f'v{TMP+5}',True,TMP+k%4)
        pack(D2)
        small(D1,Ar,Ai,nAi,Ar)
        s(f'''
        v_and_b32 v31, 15, {vL}
        v_lshlrev_b32 v31, 6, v31
        v_lshrrev_b32 v3, 4, {vL}
        v_lshl_add_u32 v31, v3, 4, v31
        s_lshl_b32 s14, {sW}, 10
        s_add_u32 s14, s14, {L_XR}
        v_add_u32 v31, s14, v31
        v_add_u32 v30, {L_XR}, {vL16}
        ''')
        for k in range(8): s.cmul(D1+k,D1+8+k,f'v{TWC+k}',f'v{TWS+k}',True,TMP+k%4)
        pack(D1)
        if passb: s('s_barrier')
        for pl in range(2): s(f'ds_write_b128 v31, {vr(PK+4*pl,4)} offset:{4096*pl}','xw'+nm)
        s.wait(lg='xw'+nm); s('s_barrier')
        reads('v30','y'+nm)
        s(f'''
        v_bfe_u32 v31, {vL}, 1, 3
        v_lshlrev_b32 v31, 16, v31
        v_lshl_add_u32 v31, v3, 5, v31
        v_and_b32 v3, 1, {vL}
        v_lshl_add_u32 v31, v3, 4, v31
        s_lshl_b32 s14, {sW}, 19
        s_lshl_b32 s15, {sCOL}, 8
        s_add_u32 s14, s14, s15
        s_add_u32 s14, s14, {OFF_Y1+(128 if passb else 0)}
        s_add_u32 s15, s14, {sIM}
        ''')
        big('y'+nm,Br,Bi,nBi,Br)
        s.wait(vm='t2g')
        for pl in range(1 if passb else 2):
            for k in range(8): s(f'v_mul_f32 v{D1+8*pl+k}, v{D1+8*pl+k}, v{RC+8+k}')
            for k in range(4): s(f'v_cvt_pk_bf16_f32 v{PK+4*pl+k}, v{D1+8*pl+2*k}, v{D1+8*pl+2*k+1}')
            s(f'buffer_store_dwordx4 {vr(PK+4*pl,4)}, v31, {sWS}, s{14+pl} offen sc1','sty')
    def t2_passb(s):
        L=s.lab('L_nob')
        s(f's_cmp_lg_u32 {sCOL}, 0\ns_cbranch_scc1 {L}')
        def body():
            s(f'''
            v_and_b32 v3, 15, {vL}
            v_lshrrev_b32 v31, 4, {vL}
            v_lshl_add_u32 v3, v31, 9, v3
            v_mul_u32_u24 v3, 514, v3
            s_mul_i32 s14, {sW}, {16*514}
            ''')
            for jj in range(8):
                if jj: s('s_add_u32 s14, s14, 32896')
                s(f'buffer_load_ushort v{RC+jj}, v3, {sWR}, s14 offen offset:512','wb')
                s(f'buffer_load_ushort v{RC+16+jj}, v3, {sWI}, s14 offen offset:512','wb')
            s.wait(vm='wb')
            for jj in range(8): s(f'v_lshl_or_b32 v{RC+jj}, v{RC+16+jj}, 16, v{RC+jj}')
            s.t2(passb=True)
        s.optional(s.sub(body))
        s(f'{L}:')
    def setup_g2(s):
        s(f'''
        s_lshr_b32 s14, {sMEM}, 3
        s_lshl_b32 {sRB}, {sGRP}, 1
        s_add_u32 {sRB}, {sRB}, s14
        s_and_b32 {sCB}, {sMEM}, 7
        s_add_u32 s14, {sRB}, {sCB}
        s_and_b32 s14, s14, 3
        s_lshl_b32 s14, s14, 2
        s_add_u32 s14, s14, {sW}          ; rot + w
        ''')
        for n in range(11):
            if n<8:
                s(f's_add_u32 s15, s14, {4*(n%4)}\ns_and_b32 s15, s15, 15')
            else:
                s(f's_add_u32 s15, s14, {4*(n-8)}\ns_cmp_ge_u32 s15, 11\ns_cselect_b32 s16, 11, 0\ns_sub_u32 s15, s15, s16\ns_cmp_ge_u32 s15, 11\ns_cselect_b32 s16, 11, 0\ns_sub_u32 s15, s15, s16')
            s(f's_mul_i32 s16, s15, 3\ns_lshl_b32 s15, s15, 1\ns_add_u32 s15, s15, 11\ns_min_u32 s15, s15, s16\ns_add_u32 {sPAIR(n)}, s15, {n//4}')
        s(f'''
        s_cmp_eq_u32 {sW}, 3
        s_cselect_b32 {sPAIR(10)}, 0x4000, {sPAIR(10)}
        s_lshl_b32 {sW2B}, {sCB}, 7
        s_lshl_b32 {sLE}, {sW}, 13
        s_add_u32 {sLE}, {sLE}, {L_W2E}
        s_mul_i32 {sLR}, {sW}, {SLOT}
        v_lshrrev_b32 v30, 3, {vL}
        v_lshlrev_b32 v30, 10, v30
        v_and_b32 v3, 7, {vL}
        v_bfe_u32 v31, {vL}, 4, 1
        v_lshlrev_b32 v31, 2, v31
        v_xor_b32 v3, v3, v31
        v_lshl_add_u32 {vW2D[0]}, v3, 4, v30
        v_add_u32 {vW2D[1]}, 7168, {vW2D[0]}
        v_add_u32 {vW2D[2]}, {2*7168}, {vW2D[0]}
        v_add_u32 {vW2D[3]}, {3*7168}, {vW2D[0]}
        v_bfe_u32 v3, {vL}, 4, 1
        v_xor_b32 {vYD}, {vL}, v3
        v_lshlrev_b32 {vYD}, 4, {vYD}
        ''')
        s(f'''
        v_lshrrev_b32 v31, 5, {vL}
        v_bfe_u32 v30, {vL}, 2, 2
        v_lshl_add_u32 v3, v31, 2, v30
        v_lshlrev_b32 v3, 7, v3
        v_bfe_u32 v248, {vL}, 3, 1
        v_lshl_add_u32 v3, v248, 6, v3
        v_bfe_u32 v249, {vL}, 4, 1
        v_lshl_add_u32 v3, v249, 5, v3
        v_and_b32 v250, 3, {vL}
        v_lshl_add_u32 v3, v250, 3, v3
        v_add_u32 {vW2F[0]}, {sLR}, v3
        v_add_u32 {vW2E[0]}, {sLE}, v3
        v_xor_b32 {vW2F[1]}, 64, {vW2F[0]}
        v_xor_b32 {vW2E[1]}, 64, {vW2E[0]}
        ''')
        s(f'''
        v_lshl_add_u32 v3, v31, 6, v30
        v_lshlrev_b32 v3, 7, v3
        v_lshl_add_u32 v3, v249, 6, v3
        v_bfe_u32 v251, {vL}, 1, 1
        v_lshl_add_u32 v3, v251, 5, v3
        v_lshl_add_u32 v3, v248, 4, v3
        v_and_b32 v251, 1, {vL}
        v_lshl_add_u32 v3, v251, 3, v3
        v_add_u32 {vYF[0]}, {sLR}, v3
        v_xor_b32 {vYF[1]}, 16, {vYF[0]}
        ''')
    def slot_of(s,n): return n if n<9 else n-9
    def w2_dma(s,n):
        sl=s.slot_of(n)
        if sl<2: s(f's_add_u32 s16, {sLE}, {4096*sl}')
        else: s(f's_add_u32 s16, {sLR}, {4096*(sl-2)}')
        s(f's_mov_b32 m0, s16\ns_lshl_b32 s15, {sPAIR(n)}, 15\ns_add_u32 s15, s15, {sW2B}')
        for i in range(4): s(f'buffer_load_dwordx4 {vW2D[i]}, {sW2}, s15 offen offset:{1024*i} lds',f'w2_{n}')
    def h_loads(s,n):
        s(f's_lshl_b32 s15, {sPAIR(n)}, 11\ns_add_u32 s15, s15, {sHB}\ns_add_u32 s16, s15, {43*2048}')
        for i in range(2):
            for u in range(2): s(f'buffer_load_dwordx4 {ar(aH+16*n+8*i+4*u,4)}, {vL16}, {sWS}, s{15+i} offen offset:{1024*u} sc1',f'h_{n}')
    def g2_reads(s,n,u,b):
        sl=s.slot_of(n)
        for dt in range(2):
            base,o=(vW2E[dt],4096*sl) if sl<2 else (vW2F[dt],4096*(sl-2))
            for hh in range(2): s(f'ds_read_b64_tr_b16 {vr(RB_+8*b+4*dt+2*hh,2)}, {base} offset:{o+2048*u+1024*hh}',f'g2r{n}_{u}')
    def g2_main(s,HD=3):
        s(f's_mul_i32 {sHB}, {sRB}, {2*43*2048}\ns_add_u32 {sHB}, {sHB}, {OFF_H}')
        for n in range(HD): s.h_loads(n)
        s.wait(vm='w2_0'); s.g2_reads(0,0,0)
        for n in range(11):
            for u in range(2):
                m=2*n+u; b=m%2
                if u==0: s.g2_reads(n,1,1-b)
                elif n<10:
                    s.wait(vm=f'w2_{n+1}'); s.g2_reads(n+1,0,1-b)
                if u==0 and n+HD<11: s.h_loads(n+HD)
                s.wait(vm=f'h_{n}',lg=f'g2r{n}_{u}')
                if u==1 and n+9<11: s.w2_dma(n+9)
                for dt in range(2):
                    for i in range(2):
                        acc=vr(RC+32*dt+16*i,16)
                        s(f'v_mfma_f32_32x32x16_bf16 {acc}, {vr(RB_+8*b+4*dt,4)}, {ar(aH+16*n+8*i+4*u,4)}, {acc if m else 0}')
    def y_dma(s):
        s(f's_lshl_b32 s15, {sRB}, 16\ns_lshl_b32 s16, {sW}, 14\ns_add_u32 s15, s15, s16\ns_add_u32 s15, s15, {OFF_Y1}')
        for q in range(4):
            s(f's_add_u32 s16, {sLR}, {4096*q}\ns_mov_b32 m0, s16\ns_add_u32 s17, s15, {4096*q}')
            for i in range(4): s(f'buffer_load_dwordx4 {vYD}, {sWS}, s17 offen offset:{1024*i} sc1 lds',f'y{q}')
    def scale_acc(s):
        s.wait(vm='omg')
        for i in range(2): s(f'v_sub_f32 {vOMG[i]}, 1.0, {vOMG[i]}')
        for dt in range(2):
            for i in range(2):
                for k in range(16): s(f'v_mul_f32 v{RC+32*dt+16*i+k}, v{RC+32*dt+16*i+k}, {vOMG[i]}')
    def t3(s):
        def rd(u,b):
            for i in range(2):
                for hh in range(2): s(f'ds_read_b64_tr_b16 {vr(RB_+8*b+4*i+2*hh,2)}, {vYF[i]} offset:{1024*u+512*hh}',f't3r{u}')
        s.wait(vm='y3'); rd(0,0)
        for u in range(8):
            b=u%2
            if u<7: rd(u+1,1-b)
            s.wait(lg=f't3r{u}')
            for dt in range(2):
                for i in range(2):
                    acc=vr(RC+32*dt+16*i,16)
                    s(f'v_mfma_f32_32x32x16_bf16 {acc}, {vr(GC+8*u+4*dt,4)}, {vr(RB_+8*b+4*i,4)}, {acc}')
    def final(s):
        P=RED_PITCH
        s(f'''
        v_and_b32 v30, 31, {vL}
        v_mul_u32_u24 v30, {P}, v30
        v_lshrrev_b32 v31, 5, {vL}
        v_lshl_add_u32 v30, v31, 4, v30
        s_mul_i32 s14, {sW}, {64*P}
        v_add_u32 v30, s14, v30
        v_lshrrev_b32 v31, 3, v0
        v_lshlrev_b32 v4, 10, v31
        v_mul_u32_u24 v31, {P}, v31
        v_and_b32 v3, 7, v0
        v_lshl_add_u32 v31, v3, 5, v31
        v_lshl_add_u32 v4, v3, 4, v4
        s_lshl_b32 s14, {sRB}, 16
        s_lshl_b32 s15, {sCB}, 7
        s_add_u32 s14, s14, s15
        s_add_u32 s15, s14, {32*1024}
        s_barrier
        ''')
        for i in range(2):
            for dt in range(2):
                for q in range(4): s(f'ds_write_b128 v30, {vr(RC+32*dt+16*i+4*q,4)} offset:{32*P*i+128*dt+32*q}','rw')
        s.wait(lg='rw'); s('s_barrier')
        B=48
        for ps in range(2):
            for w in range(4):
                for hf in range(2): s(f'ds_read_b128 {vr(B+32*ps+8*w+4*hf,4)}, v31 offset:{64*P*w+32*P*ps+16*hf}',f'rr{ps}{w}')
            b=B+32*ps
            s.wait(lg=f'rr{ps}1')
            for k in range(8): s(f'v_add_f32 v{b+k}, v{b+k}, v{b+8+k}')
            s.wait(lg=f'rr{ps}3')
            for k in range(8): s(f'v_add_f32 v{b+16+k}, v{b+16+k}, v{b+24+k}')
            for k in range(8): s(f'v_add_f32 v{b+k}, v{b+k}, v{b+16+k}')
            for k in range(4): s(f'v_cvt_pk_bf16_f32 v{b+8+k}, v{b+2*k}, v{b+2*k+1}')
            s(f'buffer_store_dwordx4 {vr(b+8,4)}, v4, {sOUT}, s{14+ps} offen','out')
    def epilogue(s):
        if s.prof:
            s.stamp()
            s('s_waitcnt vmcnt(0)'); s.stamp()
            s('s_waitcnt lgkmcnt(0)')
            for k in range(12): s(f'v_mov_b32 v{8+k}, s{STAMP0+2*k}' if k<s.nst else f'v_mov_b32 v{8+k}, 0')
            s(f'''
            v_cmp_eq_u32 vcc, 0, {vL}
            v_mov_b32 v30, 0x40000000
            v_mov_b32 v3, {OFF_STAMP}
            v_cndmask_b32 v30, v30, v3, vcc
            s_lshl_b32 s14, s2, 2
            s_add_u32 s14, s14, {sW}
            s_lshl_b32 s14, s14, 6
            ''')
            for k in range(3): s(f'buffer_store_dwordx4 {vr(8+4*k,4)}, v30, {sWS}, s14 offen offset:{16*k}')
        s('L_end:\ns_endpgm')
    def build(s):
        s.prologue(); s.first_loads(); s.setup_g1(); s.bias_loads()
        s.g1_dma(0)
        s.const_t1(); s.setup_g2(); s.const_t2()
        s(f'v_nop')
        s.t1(); s.wt(); s.gate()
        s.stamp()
        s.g1_dma(1); s.g1_dma(2)
        s.bias_mfma()
        s.const_g()
        s.g1_main(D=2,hooks={'sigc':0})
        s.stamp()
        s.w2_dma(0); s.w2_dma(1)
        s.poll256(OFF_F1)
        s(f'''
        s_cmp_eq_u32 s2, 0
        s_cselect_b32 s14, {OFF_GEN}, 0x40000000
        v_mov_b32 v30, s14
        v_mov_b32 v3, {sTAG}
        buffer_store_dword v3, v30, {sWS}, 0 offen sc1
        ''')
        s.t2_loads()
        s('s_barrier')
        s.g1_epi()
        s.stamp()
        for n in range(2,9): s.w2_dma(n)
        s.wait(vm='sth'); s('s_barrier'); s.signal(OFF_FH,sT1)
        s.t2(); s.t2_passb()
        s.stamp()
        s.poll16(OFF_FH)
        s('s_barrier'); s.signal(OFF_FY,'s2')
        s.stamp()
        s.g2_main()
        s.stamp()
        s.poll256(OFF_FY)
        s.y_dma(); s.scale_acc(); s.t3()
        s.final(); s.epilogue()
        return s.text(f'; @launch grid=(256,1,1) block=(256,1,1) lds={LDS_BYTES}')

if __name__=='__main__':
    for prof,name in ((False,'k1.s'),(True,'k1p.s')):
        g=KG(prof=prof); t=g.build(); open(name,'w').write(t)
        print(name,len(g.final),'instrs',g.nops,'nop states')
```

```python
import sys, math
from kgen import *
from model import OFF_X1T, OFF_WT, OFF_Y1, OFF_H, OFF_G, OFF_FLAG
OFF_F1=OFF_FLAG; OFF_FH=OFF_FLAG+4096; OFF_FY=OFF_FLAG+8192; OFF_GEN=OFF_FLAG+12288
OFF_STAMP=14<<20
WS_REC=16<<20
SLOT=28672; L_XR=114688; L_T2=122880; L_W2E=131072; LDS_BYTES=163840
RED_PITCH=272
sX,sWR,sWI,sW1,sB1,sW2,sGW,sOUT,sWS=[f's[{28+4*i}:{31+4*i}]' for i in range(9)]
sW,sGRP,sMEM,sP0,sT1,sRB,sCB,sCOL,sTAG,sROT='s4 s5 s6 s7 s8 s9 s10 s11 s12 s13'.split()
sPAIR=lambda n:f's{64+n}'
sXO,sW1O,sLX,sLW,sIM,sHB,sW2B,sLE,sLR='s75 s76 s77 s78 s79 s26 s27 s24 s25'.split()
STAMP0=80
vL,vL16='v1','v2'
vXD=[f'v{4+i}' for i in range(4)]; vW1D=[f'v{8+i}' for i in range(3)]; vXF=[f'v{11+i}' for i in range(4)]; vW1F=['v15','v16']
vW2D=[f'v{17+i}' for i in range(4)]; vW2F=['v21','v22']; vW2E=['v23','v24']; vYF=['v25','v26']; vYD='v27'; vOMG=['v28','v29']
TWC=32; TWS=40; GC=48; RA=112; RB_=160; RC=192
aH=0; aF64=176; aF32=200
def vr(a,n=1): return f'v{a}' if n==1 else f'v[{a}:{a+n-1}]'
def ar(a,n=1): return f'a{a}' if n==1 else f'a[{a}:{a+n-1}]'

class KG(Gen):
    def __init__(s, prof=False, stop=99):
        super().__init__(); s.prof=prof; s.nst=0; s.stop=stop
    def stamp(s,name='std'):
        if s.prof and (name=='always' or name==s.prof):
            assert s.nst<11
            s(f's_memrealtime s[{STAMP0+2*s.nst}:{STAMP0+2*s.nst+1}]'); s.nst+=1
    def prologue(s):
        s(f'''
        s_cmp_ge_u32 s2, 256
        s_cbranch_scc1 L_end
        s_load_dwordx16 s[4:19], s[0:1], 0
        s_load_dwordx4 s[20:23], s[0:1], 64
        s_load_dwordx2 s[24:25], s[0:1], 80
        ''')
        s.stamp('always')
        s(f'''
        v_and_b32 {vL}, 63, v0
        v_lshrrev_b32 v3, 6, v0
        v_lshlrev_b32 {vL16}, 4, {vL}
        v_readfirstlane_b32 s3, v3
        s_waitcnt lgkmcnt(0)
        ''')
        for i,(p,n) in enumerate([(4,2097152),(6,1052672),(8,1052672),(12,1409024),(14,2752),(16,1409024),(18,1024),(20,2097152),(24,WS_REC)]):
            b=28+4*i
            s(f's_mov_b32 s{b}, s{p}\ns_and_b32 s{b+1}, s{p+1}, 0xffff\ns_mov_b32 s{b+2}, {n}\ns_mov_b32 s{b+3}, 0x20000')
        s(f'''
        s_mov_b32 {sW}, s3
        s_and_b32 s14, s2, 7
        s_lshr_b32 s15, s2, 3
        s_lshr_b32 s16, s15, 4
        s_lshl_b32 {sGRP}, s14, 1
        s_add_u32 {sGRP}, {sGRP}, s16
        s_and_b32 {sMEM}, s15, 15
        s_lshl_b32 {sT1}, {sGRP}, 4
        s_add_u32 {sT1}, {sT1}, {sMEM}
        ''')
    def first_loads(s):
        s(f'''
        s_lshl_b32 s14, {sW}, 11
        s_add_u32 s15, s14, {L_XR}
        s_mov_b32 m0, s15
        s_lshl_b32 s16, {sT1}, 13
        s_add_u32 s16, s16, s14
        ''')
        s(f'buffer_load_dwordx4 {vL16}, {sX}, s16 offen lds','xr')
        s(f'buffer_load_dwordx4 {vL16}, {sX}, s16 offen offset:1024 lds','xr')
        s(f'''
        v_and_b32 v3, 1, v0
        v_mul_u32_u24 v3, {4*32896}, v3
        v_and_b32 v30, 0xfe, v0
        v_add_u32 v3, v3, v30
        s_and_b32 s14, s2, 63
        s_lshr_b32 s15, s2, 6
        s_lshl_b32 s15, s15, 9
        s_add_u32 s14, s14, s15
        s_mul_i32 s14, s14, 514
        ''')
        for jj in range(4):
            if jj: s(f's_add_u32 s14, s14, 32896')
            for ps in range(2):
                s(f'buffer_load_ushort v{64+8*ps+jj}, v3, {sWR}, s14 offen offset:{256*ps}','wl')
                s(f'buffer_load_ushort v{68+8*ps+jj}, v3, {sWI}, s14 offen offset:{256*ps}','wl')
        s(f'buffer_load_dwordx4 v[80:83], {vL16}, {sGW}, 0 offen','gw')
        s(f'v_mov_b32 v30, {OFF_GEN}')
        s(f'buffer_load_dword v84, v30, {sWS}, 0 offen sc1','gen')
    def setup_g1(s):
        s(f'''
        s_mul_i32 s14, {sMEM}, 3
        s_lshl_b32 s15, {sMEM}, 1
        s_add_u32 s15, s15, 11
        s_min_u32 {sP0}, s14, s15
        s_and_b32 s14, {sGRP}, 1
        s_lshl_b32 s14, s14, 2
        s_add_u32 s14, s14, {sMEM}
        s_and_b32 {sROT}, s14, 7
        s_lshl_b32 s14, {sGRP}, 2
        s_add_u32 s14, s14, {sW}
        s_lshl_b32 {sXO}, s14, 15          ; (128grp+32w)*1024
        s_mul_i32 {sHB}, s14, {43*2048}
        s_lshl_b32 s15, {sP0}, 11
        s_add_u32 {sHB}, {sHB}, s15
        s_add_u32 {sHB}, {sHB}, {OFF_H}
        s_mul_i32 {sW1O}, {sW}, {16*2752}
        s_lshl_b32 s15, {sP0}, 6
        s_add_u32 {sW1O}, {sW1O}, s15
        s_lshl_b32 {sLX}, {sW}, 12
        s_mul_i32 {sLW}, {sW}, 3072
        s_add_u32 {sLW}, {sLW}, 16384
        ''')
        s(f'''
        v_lshrrev_b32 v30, 3, {vL}
        v_lshlrev_b32 v30, 10, v30
        v_lshrrev_b32 v31, 4, {vL}
        v_and_b32 v3, 7, {vL}
        v_xor_b32 v3, v3, v31
        v_lshl_add_u32 {vXD[0]}, v3, 4, v30
        v_xor_b32 {vXD[1]}, 64, {vXD[0]}
        v_add_u32 {vXD[1]}, {7168}, {vXD[1]}
        v_add_u32 {vXD[2]}, {2*7168}, {vXD[0]}
        v_add_u32 {vXD[3]}, {2*7168}, {vXD[1]}
        ''')
        s(f's_cmp_gt_u32 {sMEM}, 10\ns_cselect_b32 s14, 8, 12')
        for i in range(3):
            s(f'''
            v_add_u32 v30, {64*i}, {vL}
            v_mul_u32_u24 v31, 0x5556, v30
            v_lshrrev_b32 v31, 18, v31
            v_mul_u32_u24 v3, 12, v31
            v_sub_u32 v3, v30, v3
            v_mul_u32_u24 v31, 2752, v31
            v_lshl_add_u32 v31, v3, 4, v31
            v_subrev_u32 v31, {1024*i}, v31
            v_cmp_gt_u32 vcc, s14, v3
            v_mov_b32 v30, 0x40000000
            v_cndmask_b32 {vW1D[i]}, v30, v31, vcc
            ''')
        s(f'''
        v_and_b32 v30, 31, {vL}
        v_lshrrev_b32 v31, 5, {vL}
        v_bfe_u32 v3, {vL}, 1, 3
        v_xor_b32 v3, v3, v31
        v_lshlrev_b32 v3, 4, v3
        v_lshl_add_u32 v3, v30, 7, v3
        v_add_u32 {vXF[0]}, {sLX}, v3
        v_xor_b32 {vXF[1]}, 32, {vXF[0]}
        v_xor_b32 {vXF[2]}, 64, {vXF[0]}
        v_xor_b32 {vXF[3]}, 96, {vXF[0]}
        ''')
        s(f'''
        v_bfe_u32 v30, {vL}, 2, 2
        v_lshl_add_u32 v30, v31, 3, v30
        v_mul_u32_u24 v30, 192, v30
        v_bfe_u32 v3, {vL}, 4, 1
        v_lshl_add_u32 v30, v3, 5, v30
        v_and_b32 v3, 3, {vL}
        v_lshl_add_u32 v30, v3, 3, v30
        v_add_u32 {vW1F[0]}, 16384, v30
        v_add_u32 {vW1F[1]}, {16384+2*SLOT}, v30
        ''')
    def bias_loads(s):
        s(f'''
        v_and_b32 v30, 31, {vL}
        v_lshlrev_b32 v30, 1, v30
        s_lshl_b32 s14, {sP0}, 6
        ''')
        for p in range(3): s(f'buffer_load_ushort v{RB_+8+4*p}, v30, {sB1}, s14 offen offset:{64*p}','b1')
    def bias_mfma(s):
        s(f'v_cmp_gt_u32 vcc, 32, {vL}\nv_mov_b32 v30, 0x3f80\nv_mov_b32 v{RB_+1}, 0\nv_mov_b32 v{RB_+2}, 0\nv_mov_b32 v{RB_+3}, 0\nv_cndmask_b32 v{RB_}, 0, v30, vcc')
        for p in range(3):
            for k in (1,2,3): s(f'v_mov_b32 v{RB_+8+4*p+k}, 0')
        s.wait(vm='b1')
        for p in range(3): s(f'v_mfma_f32_32x32x16_bf16 {vr(RA+16*p,16)}, {vr(RB_+8+4*p,4)}, {vr(RB_,4)}, 0')
    def g1_dma(s,c):
        sl=(c%4)*SLOT
        s(f'''
        s_add_u32 s14, {sROT}, {c}
        s_and_b32 s14, s14, 7
        s_lshl_b32 s15, s14, 7
        s_add_u32 s15, s15, {sXO}
        s_add_u32 s16, {sLX}, {sl}
        s_mov_b32 m0, s16
        s_mul_i32 s17, s14, {64*2752}
        ''')
        for i in range(4): s(f'buffer_load_dwordx4 {vXD[i]}, {sX}, s15 offen offset:{1024*i} lds',f'g1c{c}')
        s(f'''
        s_add_u32 s16, {sLW}, {sl}
        s_mov_b32 m0, s16
        s_add_u32 s17, s17, {sW1O}
        ''')
        for i in range(3): s(f'buffer_load_dwordx4 {vW1D[i]}, {sW1}, s17 offen offset:{1024*i} lds',f'g1c{c}')
    def angs(s,dst,step,base,ks):
        for d,k in zip(dst,ks):
            if k==0: s(f'v_mov_b32 v{d}, {base}')
            elif k==1: s(f'v_add_f32 v{d}, {step}, {base}')
            else: s(f'v_fmamk_f32 v{d}, {step}, {fl(k)}, {base}')
    def const_t1(s):
        T=RC
        s(f'''
        v_bfe_u32 v30, {vL}, 1, 3
        s_lshl_b32 s14, {sW}, 3
        v_add_u32 v30, s14, v30
        v_cvt_f32_u32 v30, v30                 ; k1
        v_lshrrev_b32 v31, 4, {vL}
        v_lshlrev_b32 v31, 2, v31
        v_cvt_f32_u32 v31, v31                 ; 4g
        v_and_b32 v3, 1, {vL}
        v_cvt_f32_u32 v3, v3                   ; pl
        v_mul_f32 v{T+8}, {fl(1/32)}, v30
        v_mul_f32 v{T+9}, {fl(0.25)}, v3
        v_fmac_f32 v{T+9}, v{T+8}, v31
        ''')
        s.angs(range(T,T+8),f'v{T+8}',f'v{T+9}',[16*(j//4)+j%4 for j in range(8)])
        for j in range(8): s(f'v_cos_f32 v{T+j}, v{T+j}')
        for j in range(4): s(f'v_cvt_pk_bf16_f32 v{48+j}, v{T+2*j}, v{T+2*j+1}')
        s(f'''
        v_fma_f32 v63, v3, 2.0, -1.0
        v_mul_f32 v{T+8}, {fl(-1/512)}, v30
        v_mul_f32 v{T+8}, v{T+8}, v63          ; pl? -k1/512 : +k1/512
        v_mul_f32 v{T+9}, v{T+8}, v31
        ''')
        s.angs(range(T,T+4),f'v{T+8}',f'v{T+9}',range(4))
        for j in range(4): s(f'v_cos_f32 v{52+j}, v{T+j}\nv_sin_f32 v{56+j}, v{T+j}')
        s(f'''
        v_bfe_u32 v30, {vL}, 1, 3
        v_cvt_f32_u32 v30, v30
        v_mul_f32 v{T+8}, {fl(1/16)}, v30
        v_mul_f32 v{T+9}, {fl(0.25)}, v3
        v_and_b32 v30, 15, {vL}
        v_cmp_eq_u32 vcc, 1, v30
        v_cndmask_b32 v{T+8}, v{T+8}, 0.5, vcc
        v_cndmask_b32 v{T+9}, v{T+9}, 0, vcc
        v_fmac_f32 v{T+9}, v{T+8}, v31
        ''')
        s.angs(range(T,T+4),f'v{T+8}',f'v{T+9}',range(4))
        for j in range(4): s(f'v_cos_f32 v{T+j}, v{T+j}')
        for j in range(2): s(f'v_cvt_pk_bf16_f32 v{60+j}, v{T+2*j}, v{T+2*j+1}')
        s(f'''
        v_cmp_gt_u32 vcc, 16, {vL}
        v_cndmask_b32 v62, v63, 0, vcc
        v_cmp_eq_u32 vcc, 1, v0
        v_cndmask_b32 v62, v62, 1.0, vcc
        ''')
    def const_t2(s):
        T=RA
        T=RC
        s(f'''
        v_and_b32 v30, 15, {vL}
        s_lshl_b32 s14, {sW}, 4
        v_add_u32 v3, s14, v30
        v_cvt_f32_u32 v3, v3                   ; col = 16w + l%16
        v_lshrrev_b32 v31, 4, {vL}
        v_cvt_f32_u32 v31, v31                 ; g
        v_mul_f32 v{T+16}, {fl(1/64)}, v3
        v_mul_f32 v{T+17}, 4.0, v31
        v_mul_f32 v{T+17}, v{T+17}, v{T+16}
        s_mov_b32 s14, 0x80008000
        ''')
        def tri(dst_a, n):
            for j in range(8): s(f'v_sin_f32 v{T+8+j}, v{T+j}\nv_cos_f32 v{T+j}, v{T+j}')
            for j in range(4):
                s(f'v_cvt_pk_bf16_f32 v{T+2*j}, v{T+2*j}, v{T+2*j+1}\nv_cvt_pk_bf16_f32 v{T+8+2*j}, v{T+8+2*j}, v{T+8+2*j+1}')
            for j in range(4):
                s(f'v_accvgpr_write_b32 a{dst_a+4*n+j}, v{T+2*j}\nv_accvgpr_write_b32 a{dst_a+16+4*n+j}, v{T+8+2*j}\nv_xor_b32 v{T+8+2*j}, s14, v{T+8+2*j}')
            for j in range(4): s(f'v_accvgpr_write_b32 a{dst_a+8+4*n+j}, v{T+8+2*j}')
        for u in range(2):
            s.angs(range(T,T+8),f'v{T+16}',f'v{T+17}',[32*u+16*(j//4)+j%4 for j in range(8)])
            tri(aF64,u)
        s(f'v_mul_f32 v{T+16}, {fl(1/2048)}, v3\nv_mul_f32 v{T+17}, {fl(8.0)}, v31\nv_mul_f32 v{T+17}, v{T+17}, v{T+16}')
        s.angs(range(T,T+8),f'v{T+16}',f'v{T+17}',range(8))
        for j in range(8): s(f'v_cos_f32 v{TWC+j}, v{T+j}\nv_sin_f32 v{TWS+j}, v{T+j}')
        s(f'''
        v_bfe_u32 v3, {vL}, 2, 2
        v_and_b32 v30, 3, {vL}
        v_lshl_add_u32 v3, v3, 3, v30
        v_cvt_f32_u32 v3, v3
        v_mul_f32 v31, {fl(8.0)}, v31
        ''')
        for t in range(2):
            s(f'v_add_f32 v30, {fl(4.0*t)}, v3\nv_mul_f32 v{T+16}, {fl(1/32)}, v30\nv_mul_f32 v{T+17}, v31, v{T+16}')
            s.angs(range(T,T+8),f'v{T+16}',f'v{T+17}',range(8))
            tri(aF32,t)
    def const_g(s):
        T=RC+16
        sc=2.0/(2048*512)
        s(f'''
        v_and_b32 v30, 31, {vL}
        s_lshl_b32 s14, {sCB}, 6
        v_add_u32 v30, s14, v30
        v_lshrrev_b32 v31, 5, {vL}
        v_lshlrev_b32 v31, 5, v31
        s_lshl_b32 s14, {sW}, 6
        v_add_u32 v31, s14, v31
        v_cvt_f32_u32 v31, v31                 ; b0
        ''')
        for dt in range(2):
            c=[T+0,T+1,T+2]; sn=[T+3,T+4,T+5]; tc=T+6; th=T+7
            s(f'''
            v_add_u32 v3, {32*dt}, v30
            v_cvt_f32_u32 v{th}, v3
            v_mul_f32 v{th}, {fl(1/512)}, v{th}
            v_mul_f32 v{c[0]}, v{th}, v31
            v_add_f32 v{c[1]}, v{th}, v{c[0]}
            v_fract_f32 v{c[0]}, v{c[0]}
            v_fract_f32 v{c[1]}, v{c[1]}
            v_cos_f32 v{tc}, v{th}
            v_sin_f32 v{sn[0]}, v{c[0]}
            v_sin_f32 v{sn[1]}, v{c[1]}
            v_cos_f32 v{c[0]}, v{c[0]}
            v_cos_f32 v{c[1]}, v{c[1]}
            v_add_f32 v{tc}, v{tc}, v{tc}
            v_mul_f32 v{sn[0]}, {fl(-sc)}, v{sn[0]}
            v_mul_f32 v{sn[1]}, {fl(-sc)}, v{sn[1]}
            v_mul_f32 v{c[0]}, {fl(sc)}, v{c[0]}
            v_mul_f32 v{c[1]}, {fl(sc)}, v{c[1]}
            ''')
            for n in range(32):
                if n>=2:
                    s(f'v_fma_f32 v{c[n%3]}, v{tc}, v{c[(n-1)%3]}, -v{c[(n-2)%3]}\nv_fma_f32 v{sn[n%3]}, v{tc}, v{sn[(n-1)%3]}, -v{sn[(n-2)%3]}')
                s(f'v_cvt_pk_bf16_f32 v{GC+(n//4)*8+dt*4+n%4}, v{c[n%3]}, v{sn[n%3]}')
            import struct
            hb=struct.unpack('<I',struct.pack('<f',sc/2))[0]>>16
            s(f'''
            v_lshlrev_b32 v3, 31, v3
            v_or_b32 v3, {hex(hb|(hb<<16))}, v3
            v_cmp_gt_u32 vcc, 32, v0
            v_cndmask_b32 v{GC+dt*4}, v{GC+dt*4}, v3, vcc
            ''')
    def t1(s):
        A=RC; D=RC+32
        s(f'v_lshlrev_b32 v30, 3, {vL}\nv_add_u32 v30, {L_XR}, v30\ns_lshl_b32 s14, {sW}, 11\ns_add_u32 s14, s14, {L_XR}\nv_add_u32 v31, s14, {vL16}')
        s.wait(vm='xr'); s('s_barrier')
        s.stamp()
        for r in range(8):
            for hh in range(2): s(f'ds_read_b64_tr_b16 {vr(A+4*r+2*hh,2)}, v30 offset:{1024*r+512*hh}',f't1a{r}')
            if r==3:
                pass
        for r in range(8):
            s.wait(lg=f't1a{r}')
            s(f'v_mfma_f32_16x16x32_bf16 {vr(D+4*r,4)}, {vr(A+4*r,4)}, v[48:51], 0')
        for e in range(2): s(f'ds_read_b128 {vr(88+4*e,4)}, v31 offset:{1024*e}','gx')
        for r in range(8):
            for k in range(4): s(f'v_mul_f32 v{A+4*r+k}, v{D+4*r+k}, v{52+k}')
            for k in range(4): s(f'v_fmac_f32_dpp v{A+4*r+k}, v{D+4*r+k}, v{56+k} quad_perm:[1,0,3,2] row_mask:0xf bank_mask:0xf')
            for k in range(2): s(f'v_cvt_pk_bf16_f32 v{D+4*r+k}, v{A+4*r+2*k}, v{A+4*r+2*k+1}')
            if r>=1: s(f'v_mfma_f32_16x16x16_bf16 {vr(A+4*(r-1),4)}, v[60:61], {vr(D+4*(r-1),2)}, 0')
        s(f'v_mfma_f32_16x16x16_bf16 {vr(A+28,4)}, v[60:61], {vr(D+28,2)}, 0')
        s(f'''
        v_bfe_u32 v30, {vL}, 1, 3
        v_lshrrev_b32 v3, 4, {vL}
        v_lshl_add_u32 v30, v3, 6, v30
        v_lshlrev_b32 v30, 13, v30
        v_and_b32 v3, 1, {vL}
        v_lshl_add_u32 v30, v3, 4, v30
        s_lshl_b32 s14, {sW}, 16
        s_lshl_b32 s15, {sT1}, 5
        s_add_u32 s14, s14, s15
        s_add_u32 s15, s14, {32*8192}
        ''')
        for r in range(8):
            s(f'v_fmac_f32_dpp v{A+4*r}, v{A+4*r+1}, v62 quad_perm:[1,0,3,2] row_mask:0xf bank_mask:0xf')
            s(f'v_fmac_f32_dpp v{A+4*r+2}, v{A+4*r+3}, v63 quad_perm:[1,0,3,2] row_mask:0xf bank_mask:0xf')
        for e in range(2):
            for k in range(4): s(f'v_cvt_pk_bf16_f32 v{D+4*e+k}, v{A+8*k+2*e}, v{A+8*k+4+2*e}')
            s(f'buffer_store_dwordx4 {vr(D+4*e,4)}, v30, {sWS}, s{14+e} offen sc1','st1')
    def wt(s):
        s(f'''
        v_lshrrev_b32 v30, 1, v0
        v_lshlrev_b32 v30, 13, v30
        v_and_b32 v3, 1, v0
        v_lshl_add_u32 v30, v3, 4, v30
        s_bfe_u32 s14, s2, 0x20004          ; k1/16
        s_lshl_b32 s14, s14, 11
        s_lshr_b32 s15, s2, 6
        s_lshl_b32 s15, s15, 4
        s_and_b32 s16, s2, 15
        s_add_u32 s15, s15, s16
        s_lshl_b32 s15, s15, 5
        s_add_u32 s14, s14, s15
        s_add_u32 s14, s14, {OFF_WT}
        s_add_u32 s15, s14, {128*8192}
        ''')
        s.wait(vm='wl')
        for ps in range(2):
            for jj in range(4): s(f'v_lshl_or_b32 v{64+8*ps+jj}, v{68+8*ps+jj}, 16, v{64+8*ps+jj}')
            s(f'buffer_store_dwordx4 {vr(64+8*ps,4)}, v30, {sWS}, s{14+ps} offen sc1','st1')
    def gate(s):
        s.wait(vm='gw',lg='gx')
        for e in range(2):
            s(f'v_mov_b32 v{96+e}, 0')
            for k in range(4): s(f'v_dot2c_f32_bf16 v{96+e}, v{88+4*e+k}, v{80+k}')
        s('s_nop 2')
        for m in ('row_shr:1 row_mask:0xf bank_mask:0xf bound_ctrl:0','row_shr:2 row_mask:0xf bank_mask:0xf bound_ctrl:0','row_shr:4 row_mask:0xf bank_mask:0xf bound_ctrl:0','row_shr:8 row_mask:0xf bank_mask:0xf bound_ctrl:0','row_bcast:15 row_mask:0xa bank_mask:0xf','row_bcast:31 row_mask:0xc bank_mask:0xf'):
            for e in range(2): s(f'v_add_f32_dpp v{96+e}, v{96+e}, v{96+e} {m}')
        for e in range(2): s(f'v_mul_f32 v{96+e}, {fl(-math.log2(math.e))}, v{96+e}')
        for e in range(2): s(f'v_exp_f32 v{96+e}, v{96+e}')
        for e in range(2): s(f'v_add_f32 v{96+e}, 1.0, v{96+e}')
        for e in range(2): s(f'v_rcp_f32 v{96+e}, v{96+e}')
        s(f'''
        s_lshl_b32 s14, {sT1}, 5
        s_lshl_b32 s15, {sW}, 3
        s_add_u32 s14, s14, s15
        v_cmp_eq_u32 vcc, 63, {vL}
        v_mov_b32 v30, 0x40000000
        v_mov_b32 v3, {OFF_G}
        v_cndmask_b32 v30, v30, v3, vcc
        ''')
        s(f'buffer_store_dwordx2 v[96:97], v30, {sWS}, s14 offen sc1','st1')
        s.wait(vm='gen')
        s(f'v_readfirstlane_b32 {sTAG}, v84\ns_add_u32 {sTAG}, {sTAG}, 1')
    def signal(s,off,idx):
        s(f'''
        v_cmp_eq_u32 vcc, 0, v0
        v_mov_b32 v30, 0x40000000
        v_mov_b32 v3, {off}
        v_cndmask_b32 v30, v30, v3, vcc
        v_mov_b32 v3, {sTAG}
        s_lshl_b32 s14, {idx}, 2
        ''')
        s(f'buffer_store_dword v3, v30, {sWS}, s14 offen sc1','sig')
    def poll256(s,off):
        L=s.lab('L_poll'); E=s.lab('L_polled')
        s(f'''
        v_add_u32 v30, {off}, {vL16}
        s_mov_b32 s14, 0
        {L}:
        buffer_load_dwordx4 v[184:187], v30, {sWS}, 0 offen sc1
        s_add_u32 s14, s14, 1
        s_cmp_gt_u32 s14, 200000
        s_cbranch_scc1 {E}
        s_waitcnt vmcnt(0)
        v_xor_b32 v184, {sTAG}, v184
        v_xor_b32 v185, {sTAG}, v185
        v_xor_b32 v186, {sTAG}, v186
        v_xor_b32 v187, {sTAG}, v187
        v_or3_b32 v184, v184, v185, v186
        v_or_b32 v184, v184, v187
        v_cmp_ne_u32 vcc, 0, v184
        s_cbranch_vccnz {L}
        {E}:
        s_waitcnt vmcnt(0)
        ''')
    def poll16(s,off):
        L=s.lab('L_poll'); E=s.lab('L_polled')
        s(f'''
        v_and_b32 v30, 15, {vL}
        v_lshlrev_b32 v30, 2, v30
        s_lshl_b32 s15, {sGRP}, 6
        s_add_u32 s15, s15, {off}
        s_mov_b32 s14, 0
        {L}:
        buffer_load_dword v184, v30, {sWS}, s15 offen sc1
        s_add_u32 s14, s14, 1
        s_cmp_gt_u32 s14, 200000
        s_cbranch_scc1 {E}
        s_waitcnt vmcnt(0)
        v_cmp_ne_u32 vcc, {sTAG}, v184
        s_cbranch_vccnz {L}
        {E}:
        s_waitcnt vmcnt(0)
        ''')
    def g1_reads(s,c,ks,b):
        sl=(c%4)*SLOT
        xo=sl
        tag=f'g1r{c}_{ks}'
        if xo<65536: s(f'ds_read_b128 {vr(RB_+4*b,4)}, {vXF[ks]} offset:{xo}',tag)
        else:
            s(f'v_add_u32 v30, {xo}, {vXF[ks]}'); s(f'ds_read_b128 {vr(RB_+4*b,4)}, v30',tag)
        base=vW1F[(c%4)//2]; o=(c%2)*SLOT
        for p in range(3):
            for hh in range(2): s(f'ds_read_b64_tr_b16 {vr(RB_+8+12*b+4*p+2*hh,2)}, {base} offset:{o+ks*3072+hh*768+p*64}',tag)
    def g1_main(s,D=2,hooks={}):
        s.stamp('g1')
        s.wait(vm='g1c0'); s('s_barrier')
        s.g1_reads(0,0,0)
        for c in range(8):
            for ks in range(4):
                n=4*c+ks; b=n%2
                if ks<3: s.g1_reads(c,ks+1,1-b)
                elif c<7:
                    s.wait(vm=[f'g1c{c+1}']+(['st1'] if hooks.get('sigc')==c else [])); s('s_barrier')
                    s.stamp('g1')
                    if hooks.get('sigc')==c: s.signal(OFF_F1,'s2')
                    s.g1_reads(c+1,0,1-b)
                    if c+1+D<8: s.g1_dma(c+1+D)
                s.wait(lg=f'g1r{c}_{ks}')
                for p in range(3): s(f'v_mfma_f32_32x32x16_bf16 {vr(RA+16*p,16)}, {vr(RB_+8+12*b+4*p,4)}, {vr(RB_+4*b,4)}, {vr(RA+16*p,16)}')
    def g1_epi(s):
        T=RC+16; O=RC+32
        s(f's_cmp_gt_u32 {sMEM}, 10\ns_cselect_b32 s16, 0x40000000, 0')
        for p in range(3):
            if p==2: s(f's_add_u32 {sHB}, {sHB}, s16')
            for u in range(2):
                for q in range(2):
                    h=[RA+16*p+8*u+4*q+k for k in range(4)]; t=[T+4*q+k for k in range(4)]; e=[T+8+k for k in range(4)]
                    for k in range(4): s(f'v_mul_f32 v{t[k]}, {fl(math.log2(math.e))}, v{h[k]}')
                    for k in range(4): s(f'v_exp_f32 v{t[k]}, v{t[k]}')
                    for k in range(4): s(f'v_fma_f32 v{e[k]}, v{t[k]}, 0.5, 1.0')
                    for k in range(4): s(f'v_fma_f32 v{t[k]}, v{t[k]}, v{e[k]}, 1.0')
                    for k in range(4): s(f'v_rcp_f32 v{t[k]}, v{t[k]}')
                    for k in range(4): s(f'v_fma_f32 v{t[k]}, -v{h[k]}, v{t[k]}, v{h[k]}')
                    for k in range(2): s(f'v_cvt_pk_bf16_f32 v{O+4*u+2*q+k}, v{t[2*k]}, v{t[2*k+1]}')
                s(f'buffer_store_dwordx4 {vr(O+4*u,4)}, {vL16}, {sWS}, {sHB} offen offset:{(2048*p+1024*u)%4096} sc1' if p<2 else
                  f'buffer_store_dwordx4 {vr(O+4*u,4)}, {vL16}, {sWS}, s17 offen offset:{1024*u} sc1','sth')
            if p==1: s(f's_add_u32 s17, {sHB}, s16\ns_add_u32 s17, s17, 4096')
    def t2_loads(s):
        s(f'''
        s_cmp_eq_u32 s2, 0
        s_cselect_b32 {sCOL}, 120, s2
        s_cmp_eq_u32 s2, 120
        s_cselect_b32 {sCOL}, 0, {sCOL}
        s_lshl_b32 s15, {sCOL}, 13
        s_lshl_b32 s16, {sW}, 11
        s_add_u32 s17, s16, {L_T2}
        s_mov_b32 m0, s17
        v_lshlrev_b32 v30, 5, {vL}
        s_and_b32 s18, {sW}, 1
        s_lshl_b32 s18, s18, 12
        s_lshr_b32 s19, {sW}, 1
        s_lshl_b32 s19, s19, 4
        s_add_u32 s18, s18, s19
        s_add_u32 s18, s18, s15
        v_add_u32 v31, 1024, v30
        ''')
        s(f'buffer_load_dwordx4 v30, {sWS}, s18 offen sc1 lds','t2x')
        s(f'buffer_load_dwordx4 v31, {sWS}, s18 offen offset:1024 sc1 lds','t2x')
        s(f's_add_u32 s15, s15, s16\ns_add_u32 s15, s15, {OFF_WT}')
        for e in range(2): s(f'buffer_load_dwordx4 {vr(RC+4*e,4)}, v30, {sWS}, s15 offen offset:{16*e} sc1','t2w')
        s(f'''
        v_and_b32 v3, 15, {vL}
        v_lshlrev_b32 v3, 7, v3
        v_lshrrev_b32 v31, 4, {vL}
        v_lshl_add_u32 v3, v31, 5, v3
        s_add_u32 s15, s16, {OFF_G}
        ''')
        for e in range(2): s(f'buffer_load_dwordx4 {vr(RC+8+4*e,4)}, v3, {sWS}, s15 offen offset:{16*e} sc1','t2g')
        s(f'''
        v_and_b32 v3, 31, {vL}
        v_lshlrev_b32 v3, 2, v3
        s_lshl_b32 s15, {sRB}, 8
        s_add_u32 s15, s15, {OFF_G}
        ''')
        for i in range(2): s(f'buffer_load_dword {vOMG[i]}, v3, {sWS}, s15 offen offset:{128*i} sc1','omg')
    def cmul(s,re,im,c,sn,conj,tmp):
        a='' if not conj else '-'; b='-' if not conj else ''
        s(f'v_mul_f32 v{tmp}, v{re}, {sn}')
        s(f'v_mul_f32 v{re}, v{re}, {c}')
        s(f'v_fma_f32 v{re}, {a}v{im}, {sn}, v{re}')
        s(f'v_fma_f32 v{im}, v{im}, {c}, {b}v{tmp}')
    def t2(s,passb=False):
        Z=RB_; D1=RA; PK=RA+16; D2=RA+24; TMP=RA+40
        mf='v_mfma_f32_16x16x32_bf16'
        Br=lambda u:ar(aF64+4*u,4); Bi=lambda u:ar(aF64+8+4*u,4); nBi=lambda u:ar(aF64+16+4*u,4)
        Ar=lambda u:ar(aF32+4*u,4); Ai=lambda u:ar(aF32+8+4*u,4); nAi=lambda u:ar(aF32+16+4*u,4)
        z=lambda pl,t,u:Z+16*pl+8*t+4*u
        def reads(base,nm,planes=(0,1)):
            for u in range(2):
                for t in range(2):
                    for pl in planes:
                        for hh in range(2):
                            s(f'ds_read_b64_tr_b16 {vr(z(pl,t,u)+2*hh,2)}, {base} offset:{4096*pl+2048*u+1024*hh+8*t}',f'{nm}{u}{t}{pl}')
        def big(nm,m_rr,m_ir,m_ri,m_ii,real=False):
            for u in range(2):
                for t in range(2):
                    s.wait(lg=f'{nm}{u}{t}0')
                    s(f'{mf} {vr(D1+4*t,4)}, {vr(z(0,t,u),4)}, {m_rr(u)}, {vr(D1+4*t,4) if u else 0}')
                    s(f'{mf} {vr(D1+8+4*t,4)}, {vr(z(0,t,u),4)}, {m_ri(u)}, {vr(D1+8+4*t,4) if u else 0}')
                    if not real:
                        s.wait(lg=f'{nm}{u}{t}1')
                        s(f'{mf} {vr(D1+4*t,4)}, {vr(z(1,t,u),4)}, {m_ir(u)}, {vr(D1+4*t,4)}')
                        s(f'{mf} {vr(D1+8+4*t,4)}, {vr(z(1,t,u),4)}, {m_ii(u)}, {vr(D1+8+4*t,4)}')
        def pack(src):
            for pl in range(2):
                for k in range(4): s(f'v_cvt_pk_bf16_f32 v{PK+4*pl+k}, v{src+8*pl+2*k}, v{src+8*pl+2*k+1}')
        def small(dst,m_rr,m_ir,m_ri,m_ii):
            for t in range(2):
                s(f'{mf} {vr(dst+4*t,4)}, {m_rr(t)}, {vr(PK,4)}, 0')
                s(f'{mf} {vr(dst+8+4*t,4)}, {m_ri(t)}, {vr(PK,4)}, 0')
            for t in range(2):
                s(f'{mf} {vr(dst+4*t,4)}, {m_ir(t)}, {vr(PK+4,4)}, {vr(dst+4*t,4)}')
                s(f'{mf} {vr(dst+8+4*t,4)}, {m_ii(t)}, {vr(PK+4,4)}, {vr(dst+8+4*t,4)}')
        nm='b' if passb else 'a'
        if not passb:
            s(f'v_add_u32 v30, {L_T2}, {vL16}')
            s.wait(vm='t2x'); s('s_barrier')
            s.stamp()
            reads('v30','z'+nm)
            Ls=s.lab('L_nz')
            s(f's_cmp_lg_u32 {sCOL}, 0\ns_cselect_b32 {sIM}, 128, 0x40000000\ns_cbranch_scc1 {Ls}\ns_waitcnt lgkmcnt(0)'.replace('s_waitcnt lgkmcnt(0)','s_waitcnt lgkmcnt(0x0)'))
            for k in range(16): s(f'v_mov_b32 v{Z+16+k}, 0')
            s(f's_nop 1\n{Ls}:')
            big('z'+nm,Br,nBi,Bi,Br)
        else:
            s(f'v_add_u32 v30, {L_T2+4096}, {vL16}')
            reads('v30','z'+nm,planes=(0,))
            big('z'+nm,Br,nBi,Bi,Br,real=True)
        for k in range(8): s.cmul(D1+k,D1+8+k,f'v{TWC+k}',f'v{TWS+k}',False,TMP+k%4)
        pack(D1)
        small(D2,Ar,nAi,Ai,Ar)
        s.wait(vm='t2w'+('b' if passb else ''))
        for k in range(8):
            s(f'v_lshlrev_b32 v{TMP+4}, 16, v{RC+k}\nv_and_b32 v{TMP+5}, 0xffff0000, v{RC+k}')
            s.cmul(D2+k,D2+8+k,f'v{TMP+4}',f'v{TMP+5}',True,TMP+k%4)
        pack(D2)
        small(D1,Ar,Ai,nAi,Ar)
        s(f'''
        v_and_b32 v31, 15, {vL}
        v_lshlrev_b32 v31, 6, v31
        v_lshrrev_b32 v3, 4, {vL}
        v_lshl_add_u32 v31, v3, 4, v31
        s_lshl_b32 s14, {sW}, 10
        s_add_u32 s14, s14, {L_XR}
        v_add_u32 v31, s14, v31
        v_add_u32 v30, {L_XR}, {vL16}
        ''')
        for k in range(8): s.cmul(D1+k,D1+8+k,f'v{TWC+k}',f'v{TWS+k}',True,TMP+k%4)
        pack(D1)
        if passb: s('s_barrier')
        for pl in range(2): s(f'ds_write_b128 v31, {vr(PK+4*pl,4)} offset:{4096*pl}','xw'+nm)
        s.wait(lg='xw'+nm); s('s_barrier')
        reads('v30','y'+nm)
        s(f'''
        v_bfe_u32 v31, {vL}, 1, 3
        v_lshlrev_b32 v31, 16, v31
        v_lshl_add_u32 v31, v3, 5, v31
        v_and_b32 v3, 1, {vL}
        v_lshl_add_u32 v31, v3, 4, v31
        s_lshl_b32 s14, {sW}, 19
        s_lshl_b32 s15, {sCOL}, 8
        s_add_u32 s14, s14, s15
        s_add_u32 s14, s14, {OFF_Y1+(128 if passb else 0)}
        s_add_u32 s15, s14, {sIM}
        ''')
        big('y'+nm,Br,Bi,nBi,Br)
        s.wait(vm='t2g')
        for pl in range(1 if passb else 2):
            for k in range(8): s(f'v_mul_f32 v{D1+8*pl+k}, v{D1+8*pl+k}, v{RC+8+k}')
            for k in range(4): s(f'v_cvt_pk_bf16_f32 v{PK+4*pl+k}, v{D1+8*pl+2*k}, v{D1+8*pl+2*k+1}')
            s(f'buffer_store_dwordx4 {vr(PK+4*pl,4)}, v31, {sWS}, s{14+pl} offen sc1','sty')
    def t2_passb(s):
        L=s.lab('L_nob')
        s(f's_cmp_lg_u32 {sCOL}, 0\ns_cbranch_scc1 {L}')
        def body():
            s(f'''
            v_and_b32 v3, 15, {vL}
            v_lshrrev_b32 v31, 4, {vL}
            v_lshl_add_u32 v3, v31, 9, v3
            v_mul_u32_u24 v3, 514, v3
            s_mul_i32 s14, {sW}, {16*514}
            ''')
            for jj in range(8):
                if jj: s('s_add_u32 s14, s14, 32896')
                s(f'buffer_load_ushort v{RC+jj}, v3, {sWR}, s14 offen offset:512','wb')
                s(f'buffer_load_ushort v{RC+16+jj}, v3, {sWI}, s14 offen offset:512','wb')
            s.wait(vm='wb')
            for jj in range(8): s(f'v_lshl_or_b32 v{RC+jj}, v{RC+16+jj}, 16, v{RC+jj}')
            s.t2(passb=True)
        s.optional(s.sub(body))
        s(f'{L}:')
    def setup_g2(s):
        s(f'''
        s_lshr_b32 s14, {sMEM}, 3
        s_lshl_b32 {sRB}, {sGRP}, 1
        s_add_u32 {sRB}, {sRB}, s14
        s_and_b32 {sCB}, {sMEM}, 7
        s_add_u32 s14, {sRB}, {sCB}
        s_and_b32 s14, s14, 3
        s_lshl_b32 s14, s14, 2
        s_add_u32 s14, s14, {sW}          ; rot + w
        ''')
        for n in range(11):
            if n<8:
                s(f's_add_u32 s15, s14, {4*(n%4)}\ns_and_b32 s15, s15, 15')
            else:
                s(f's_add_u32 s15, s14, {4*(n-8)}\ns_cmp_ge_u32 s15, 11\ns_cselect_b32 s16, 11, 0\ns_sub_u32 s15, s15, s16\ns_cmp_ge_u32 s15, 11\ns_cselect_b32 s16, 11, 0\ns_sub_u32 s15, s15, s16')
            s(f's_mul_i32 s16, s15, 3\ns_lshl_b32 s15, s15, 1\ns_add_u32 s15, s15, 11\ns_min_u32 s15, s15, s16\ns_add_u32 {sPAIR(n)}, s15, {n//4}')
        s(f'''
        s_cmp_eq_u32 {sW}, 3
        s_cselect_b32 {sPAIR(10)}, 0x4000, {sPAIR(10)}
        s_lshl_b32 {sW2B}, {sCB}, 7
        s_lshl_b32 {sLE}, {sW}, 13
        s_add_u32 {sLE}, {sLE}, {L_W2E}
        s_mul_i32 {sLR}, {sW}, {SLOT}
        v_lshrrev_b32 v30, 3, {vL}
        v_lshlrev_b32 v30, 10, v30
        v_and_b32 v3, 7, {vL}
        v_bfe_u32 v31, {vL}, 4, 1
        v_lshlrev_b32 v31, 2, v31
        v_xor_b32 v3, v3, v31
        v_lshl_add_u32 {vW2D[0]}, v3, 4, v30
        v_add_u32 {vW2D[1]}, 7168, {vW2D[0]}
        v_add_u32 {vW2D[2]}, {2*7168}, {vW2D[0]}
        v_add_u32 {vW2D[3]}, {3*7168}, {vW2D[0]}
        v_bfe_u32 v3, {vL}, 4, 1
        v_xor_b32 {vYD}, {vL}, v3
        v_lshlrev_b32 {vYD}, 4, {vYD}
        ''')
        s(f'''
        v_lshrrev_b32 v31, 5, {vL}
        v_bfe_u32 v30, {vL}, 2, 2
        v_lshl_add_u32 v3, v31, 2, v30
        v_lshlrev_b32 v3, 7, v3
        v_bfe_u32 v248, {vL}, 3, 1
        v_lshl_add_u32 v3, v248, 6, v3
        v_bfe_u32 v249, {vL}, 4, 1
        v_lshl_add_u32 v3, v249, 5, v3
        v_and_b32 v250, 3, {vL}
        v_lshl_add_u32 v3, v250, 3, v3
        v_add_u32 {vW2F[0]}, {sLR}, v3
        v_add_u32 {vW2E[0]}, {sLE}, v3
        v_xor_b32 {vW2F[1]}, 64, {vW2F[0]}
        v_xor_b32 {vW2E[1]}, 64, {vW2E[0]}
        ''')
        s(f'''
        v_lshl_add_u32 v3, v31, 6, v30
        v_lshlrev_b32 v3, 7, v3
        v_lshl_add_u32 v3, v249, 6, v3
        v_bfe_u32 v251, {vL}, 1, 1
        v_lshl_add_u32 v3, v251, 5, v3
        v_lshl_add_u32 v3, v248, 4, v3
        v_and_b32 v251, 1, {vL}
        v_lshl_add_u32 v3, v251, 3, v3
        v_add_u32 {vYF[0]}, {sLR}, v3
        v_xor_b32 {vYF[1]}, 16, {vYF[0]}
        ''')
    def slot_of(s,n): return n if n<9 else n-9
    def w2_dma(s,n):
        sl=s.slot_of(n)
        if sl<2: s(f's_add_u32 s16, {sLE}, {4096*sl}')
        else: s(f's_add_u32 s16, {sLR}, {4096*(sl-2)}')
        s(f's_mov_b32 m0, s16\ns_lshl_b32 s15, {sPAIR(n)}, 15\ns_add_u32 s15, s15, {sW2B}')
        for i in range(4): s(f'buffer_load_dwordx4 {vW2D[i]}, {sW2}, s15 offen offset:{1024*i} lds',f'w2_{n}')
    def h_loads(s,n):
        s(f's_lshl_b32 s15, {sPAIR(n)}, 11\ns_add_u32 s15, s15, {sHB}\ns_add_u32 s16, s15, {43*2048}')
        for i in range(2):
            for u in range(2): s(f'buffer_load_dwordx4 {ar(aH+16*n+8*i+4*u,4)}, {vL16}, {sWS}, s{15+i} offen offset:{1024*u} sc1',f'h_{n}')
    def g2_reads(s,n,u,b):
        sl=s.slot_of(n)
        for dt in range(2):
            base,o=(vW2E[dt],4096*sl) if sl<2 else (vW2F[dt],4096*(sl-2))
            for hh in range(2): s(f'ds_read_b64_tr_b16 {vr(RB_+8*b+4*dt+2*hh,2)}, {base} offset:{o+2048*u+1024*hh}',f'g2r{n}_{u}')
    def g2_main(s,HD=3):
        s(f's_mul_i32 {sHB}, {sRB}, {2*43*2048}\ns_add_u32 {sHB}, {sHB}, {OFF_H}')
        for n in range(HD): s.h_loads(n)
        s.wait(vm='w2_0'); s.g2_reads(0,0,0)
        for n in range(11):
            for u in range(2):
                m=2*n+u; b=m%2
                if u==0: s.g2_reads(n,1,1-b)
                elif n<10:
                    s.wait(vm=f'w2_{n+1}'); s.g2_reads(n+1,0,1-b)
                if u==0 and n+HD<11: s.h_loads(n+HD)
                s.wait(vm=f'h_{n}',lg=f'g2r{n}_{u}')
                if u==1 and n+9<11: s.w2_dma(n+9)
                for dt in range(2):
                    for i in range(2):
                        acc=vr(RC+32*dt+16*i,16)
                        s(f'v_mfma_f32_32x32x16_bf16 {acc}, {vr(RB_+8*b+4*dt,4)}, {ar(aH+16*n+8*i+4*u,4)}, {acc if m else 0}')
    def y_dma(s):
        s(f's_lshl_b32 s15, {sRB}, 16\ns_lshl_b32 s16, {sW}, 14\ns_add_u32 s15, s15, s16\ns_add_u32 s15, s15, {OFF_Y1}')
        for q in range(4):
            s(f's_add_u32 s16, {sLR}, {4096*q}\ns_mov_b32 m0, s16\ns_add_u32 s17, s15, {4096*q}')
            for i in range(4): s(f'buffer_load_dwordx4 {vYD}, {sWS}, s17 offen offset:{1024*i} sc1 lds',f'y{q}')
    def scale_acc(s):
        s.wait(vm='omg')
        for i in range(2): s(f'v_sub_f32 {vOMG[i]}, 1.0, {vOMG[i]}')
        for dt in range(2):
            for i in range(2):
                for k in range(16): s(f'v_mul_f32 v{RC+32*dt+16*i+k}, v{RC+32*dt+16*i+k}, {vOMG[i]}')
    def t3(s):
        def rd(u,b):
            for i in range(2):
                for hh in range(2): s(f'ds_read_b64_tr_b16 {vr(RB_+8*b+4*i+2*hh,2)}, {vYF[i]} offset:{1024*u+512*hh}',f't3r{u}')
        s.wait(vm='y3'); rd(0,0)
        for u in range(8):
            b=u%2
            if u<7: rd(u+1,1-b)
            s.wait(lg=f't3r{u}')
            for dt in range(2):
                for i in range(2):
                    acc=vr(RC+32*dt+16*i,16)
                    s(f'v_mfma_f32_32x32x16_bf16 {acc}, {vr(GC+8*u+4*dt,4)}, {vr(RB_+8*b+4*i,4)}, {acc}')
    def final(s):
        P=RED_PITCH
        s(f'''
        v_and_b32 v30, 31, {vL}
        v_mul_u32_u24 v30, {P}, v30
        v_lshrrev_b32 v31, 5, {vL}
        v_lshl_add_u32 v30, v31, 4, v30
        s_mul_i32 s14, {sW}, {64*P}
        v_add_u32 v30, s14, v30
        v_lshrrev_b32 v31, 3, v0
        v_lshlrev_b32 v4, 10, v31
        v_mul_u32_u24 v31, {P}, v31
        v_and_b32 v3, 7, v0
        v_lshl_add_u32 v31, v3, 5, v31
        v_lshl_add_u32 v4, v3, 4, v4
        s_lshl_b32 s14, {sRB}, 16
        s_lshl_b32 s15, {sCB}, 7
        s_add_u32 s14, s14, s15
        s_add_u32 s15, s14, {32*1024}
        s_barrier
        ''')
        for i in range(2):
            for dt in range(2):
                for q in range(4): s(f'ds_write_b128 v30, {vr(RC+32*dt+16*i+4*q,4)} offset:{32*P*i+128*dt+32*q}','rw')
        s.wait(lg='rw'); s('s_barrier')
        B=48
        for ps in range(2):
            for w in range(4):
                for hf in range(2): s(f'ds_read_b128 {vr(B+32*ps+8*w+4*hf,4)}, v31 offset:{64*P*w+32*P*ps+16*hf}',f'rr{ps}{w}')
            b=B+32*ps
            s.wait(lg=f'rr{ps}1')
            for k in range(8): s(f'v_add_f32 v{b+k}, v{b+k}, v{b+8+k}')
            s.wait(lg=f'rr{ps}3')
            for k in range(8): s(f'v_add_f32 v{b+16+k}, v{b+16+k}, v{b+24+k}')
            for k in range(8): s(f'v_add_f32 v{b+k}, v{b+k}, v{b+16+k}')
            for k in range(4): s(f'v_cvt_pk_bf16_f32 v{b+8+k}, v{b+2*k}, v{b+2*k+1}')
            s(f'buffer_store_dwordx4 {vr(b+8,4)}, v4, {sOUT}, s{14+ps} offen','out')
    def epilogue(s):
        if s.prof:
            s.stamp()
            s('s_waitcnt vmcnt(0)'); s.stamp('always')
            s('s_waitcnt lgkmcnt(0)')
            for k in range(12): s(f'v_mov_b32 v{8+k}, s{STAMP0+2*k}' if k<s.nst else f'v_mov_b32 v{8+k}, 0')
            s(f'''
            v_cmp_eq_u32 vcc, 0, {vL}
            v_mov_b32 v30, 0x40000000
            v_mov_b32 v3, {OFF_STAMP}
            v_cndmask_b32 v30, v30, v3, vcc
            s_lshl_b32 s14, s2, 2
            s_add_u32 s14, s14, {sW}
            s_lshl_b32 s14, s14, 6
            ''')
            for k in range(3): s(f'buffer_store_dwordx4 {vr(8+4*k,4)}, v30, {sWS}, s14 offen offset:{16*k}')
            s(f'''
            s_load_dwordx2 s[28:29], s[0:1], 72
            s_mov_b32 s30, 256
            s_mov_b32 s31, 0x20000
            v_not_b32 v20, v8
            v_mov_b32 v30, 0x40000000
            v_cndmask_b32 v30, v30, 0, vcc
            s_waitcnt lgkmcnt(0)
            ''')
            for k in range(13): s(f'buffer_atomic_umax v{8+k}, v30, s[28:31], 0 offen offset:{4*k} sc1')
        s('L_end:\ns_endpgm')
    def build(s):
        s.prologue(); s.stamp('pre'); s.first_loads(); s.stamp('pre'); s.setup_g1(); s.bias_loads()
        s.g1_dma(0); s.stamp('pre')
        s.const_t1(); s.stamp('pre'); s.setup_g2(); s.stamp('pre'); s.const_t2(); s.stamp('pre')
        s(f'v_nop')
        s.t1(); s.stamp('pre'); s.wt(); s.stamp('pre'); s.gate(); s.stamp('pre')
        s.stamp()
        s.g1_dma(1); s.g1_dma(2)
        s.bias_mfma()
        s.const_g()
        s.g1_main(D=2,hooks={'sigc':0})
        s.stamp(); s.stamp('g1')
        s.w2_dma(0); s.w2_dma(1)
        s.poll256(OFF_F1)
        s(f'''
        s_cmp_eq_u32 s2, 0
        s_cselect_b32 s14, {OFF_GEN}, 0x40000000
        v_mov_b32 v30, s14
        v_mov_b32 v3, {sTAG}
        buffer_store_dword v3, v30, {sWS}, 0 offen sc1
        ''')
        s.t2_loads()
        s('s_barrier')
        s.g1_epi()
        s.stamp()
        for n in range(2,9): s.w2_dma(n)
        s.wait(vm='sth'); s('s_barrier'); s.signal(OFF_FH,sT1)
        s.t2(); s.t2_passb()
        s.stamp()
        s.poll16(OFF_FH)
        s('s_barrier'); s.signal(OFF_FY,'s2')
        s.stamp()
        s.g2_main()
        s.stamp()
        s.poll256(OFF_FY)
        s.y_dma(); s.scale_acc(); s.t3()
        s.final(); s.epilogue()
        return s.text(f'; @launch grid=(256,1,1) block=(256,1,1) lds={LDS_BYTES}')

if __name__=='__main__':
    for prof,name in ((False,'k1.s'),('std','k1p.s'),('g1','k1g.s'),('pre','k1q.s')):
        g=KG(prof=prof); t=g.build(); open(name,'w').write(t)
        print(name,len(g.final),'instrs',g.nops,'nop states')
```
